```python
import torch

def _softmax(x, axis=-1):
    return torch.softmax(x, dim=axis)
def _gelu(x):
    return torch.nn.functional.gelu(x, approximate="tanh")
def _silu(x):
    return torch.nn.functional.silu(x)
def _sigmoid(x):
    return torch.sigmoid(x)
def _layernorm(x, axis=-1, eps=1e-5):
    m = x.mean(dim=axis, keepdim=True)
    v = x.var(dim=axis, keepdim=True, unbiased=False)
    return (x - m) / torch.sqrt(v + eps)
def _scatter_add(tgt, idx, src, axis=0):
    return tgt.clone().index_add_(axis, idx, src)
def _segment_sum(src, seg, n):
    out = torch.zeros((n,) + src.shape[1:], dtype=src.dtype)
    return out.index_add_(0, seg, src)
def _pad(x, pw):
    flat = tuple(v for pair in reversed(pw) for v in pair)
    return torch.nn.functional.pad(x, flat)

kernel_name = 'standalone__gqa_softmax__sampling'

def setup_inputs():

    _w = (lambda a: (lambda t: t.to(torch.bfloat16) if t.is_floating_point() else t)(torch.as_tensor(a)))
    B, Hq, Hkv, Sq, Sk, D = 8, 32, 8, 16, 8192, 128
    return {
        "q": _w((lambda *s: torch.randn(*s, dtype=torch.bfloat16) * 0.8)(B, Hq, Sq, D)),
        "k": _w((lambda *s: torch.randn(*s, dtype=torch.bfloat16) * 0.8)(B, Hkv, Sk, D)),
        "v": _w((lambda *s: torch.randn(*s, dtype=torch.bfloat16) * 0.05)(B, Hkv, Sk, D)),
    }

def reference(q, k, v):
    B, Hq, Sq, D = q.shape
    Hkv = k.shape[1]
    rep = Hq // Hkv
    k = (lambda x, n, axis: torch.repeat_interleave(x, n, dim=axis))(k, rep, axis=1)
    v = (lambda x, n, axis: torch.repeat_interleave(x, n, dim=axis))(v, rep, axis=1)
    scale = D ** -0.5
    scores = torch.einsum("bhqd,bhkd->bhqk", q, k) * scale
    p = _softmax(scores, axis=-1)
    return torch.einsum("bhqk,bhkd->bhqd", p, v)
```

```python
class A:
    def __init__(self):
        self.l = []
    def __call__(self, s=''):
        for line in s.strip('\n').split('\n'):
            self.l.append('    ' + line.strip() if not line.strip().endswith(':') else line.strip())
    def label(self, n):
        self.l.append(n + ':')
    def text(self):
        return '\n'.join(self.l) + '\n'

HDR = """; Kernarg layout for this problem (48 bytes, ptrs only, base s[0:1]):
"""

def kernel_desc(name, vgpr, sgpr=102, accum=None):
    if accum is None:
        accum = min(256, (vgpr + 3) // 4 * 4)
    return f""".amdhsa_kernel {name}
  .amdhsa_next_free_vgpr {vgpr}
  .amdhsa_next_free_sgpr {sgpr}
  .amdhsa_accum_offset {accum}
  .amdhsa_group_segment_fixed_size 0
  .amdhsa_kernarg_size 48
  .amdhsa_user_sgpr_count 2
  .amdhsa_user_sgpr_kernarg_segment_ptr 1
  .amdhsa_system_sgpr_workgroup_id_x 1
.end_amdhsa_kernel
"""

def kernel_head(name):
    return f""".globl {name}
.p2align 8
.type {name},@function
{name}:
"""
```

```python
import sys, struct
from asmlib import *

NAME='standalone__gqa_softmax__sampling_kernel'
def fbits(x): return struct.unpack('<I',struct.pack('<f',x))[0]
CF = 0.08838834764831845*1.4426950408889634
C_SCALE = fbits(CF)

Q0=16
K0=32
VA=64
SS=128
P0=144
O0=148
L0=180
ONE=184
KA=188
VB=192
VM=200; VMC=201; VTH=202
T0=203; T1=204; T2=205; T3=206
VMAILA=207; VMAIL=208
NVGPR=212
X0=32
XML=64

XD_OFF=1<<20
ML_OFF=48<<20
TS_OFF=480<<20
R=4
SLOT=16384
MAIL=R*SLOT

def gen(W=24, pol='nt', mapping=1, ts=False, spin=1<<16, nomem=False, cyc=False, THR=8.0, lprio=0,
        nodma=False, nocomp=False, NS=48, dyn=True, psleep=2, HSI=8, noepi=False):
    a=A()
    lds=MAIL+16384+128
    NTOT=256
    if not dyn: NS=64
    def stamp(i):
        if ts:
            a(f"{'s_memtime' if (cyc and i in (6,7)) else 's_memrealtime'} s[{60+2*i}:{61+2*i}]")
    a(f"""
    s_cmp_ge_u32 s2, 256
    s_cbranch_scc1 L_done
    s_load_dwordx4 s[4:7], s[0:1], 0
    s_load_dwordx4 s[8:11], s[0:1], 16
    s_load_dwordx4 s[12:15], s[0:1], 32
    """)
    stamp(0)
    a("""
    v_lshrrev_b32 v2, 6, v0
    v_and_b32 v3, 63, v0
    v_readfirstlane_b32 s24, v2
    """)
    if mapping==0:
        a("""
        s_lshr_b32 s25, s2, 5
        s_lshl_b32 s25, s25, 3
        s_and_b32 s26, s2, 7
        s_or_b32 s25, s25, s26
        s_lshr_b32 s26, s2, 3
        s_and_b32 s26, s26, 3
        """)
    elif mapping==1:
        a("""
        s_lshr_b32 s25, s2, 2
        s_and_b32 s26, s2, 3
        """)
    else:
        a("""
        s_and_b32 s26, s2, 7
        s_lshr_b32 s27, s26, 1
        s_xor_b32 s26, s26, s27
        s_and_b32 s26, s26, 1
        s_lshr_b32 s25, s2, 3
        s_lshl_b32 s25, s25, 1
        s_or_b32 s25, s25, s26
        s_mov_b32 s26, s27
        """)
    a(f"""
    s_cmp_lt_u32 s24, 4
    s_cbranch_scc1 L_comp
    """)
    if lprio: a(f"s_setprio {lprio}")
    a(f"""
    s_lshl_b32 s29, s25, 21
    v_lshrrev_b32 v4, 4, v3      ; rr
    v_and_b32 v5, 15, v3         ; c'
    v_lshlrev_b32 v6, 1, v4      ; f = rr<<1
    v_xor_b32 v5, v5, v6
    v_lshlrev_b32 v5, 4, v5
    v_lshl_add_u32 v1, v4, 8, v5
    v_xor_b32 v2, 0x80, v1
    s_mov_b32 s31, 0
    s_mul_i32 s46, s26, {NS}
    s_mov_b32 s49, 0x7fffffff    ; E
    v_mov_b32 v21, s49
    v_mov_b32 v22, {MAIL}
    v_mov_b32 v23, 0
    v_mov_b32 v24, 1
    v_mov_b32 v20, 0
    ds_write_b32 v22, v21
    s_waitcnt lgkmcnt(0)
    s_add_u32 s16, s6, s29
    s_addc_u32 s17, s7, 0
    s_mov_b32 s18, {0 if nomem else 0x200000}
    s_mov_b32 s19, 0x20000
    s_add_u32 s20, s8, s29
    s_addc_u32 s21, s9, 0
    s_mov_b32 s22, {0 if nomem else 0x200000}
    s_mov_b32 s23, 0x20000
    s_lshl_b32 s30, s25, 10
    s_add_u32 s38, s14, s30
    s_addc_u32 s39, s15, 0
    s_lshl_b32 s30, s25, 2
    s_add_u32 s12, s12, s30
    s_addc_u32 s13, s13, 0        ; s[12:13] = &dbg[p]
    """)
    def issue(win):
        if not nodma:
            for (srd,lo) in [(16,0),(20,8192)]:
                for h in range(2):
                    a(f"s_add_u32 s33, s31, {lo+h*4096}")
                    a(f"s_mov_b32 m0, s33")
                    a(f"s_add_u32 s35, s32, {h*4096}")
                    for n in range(4):
                        if win and W: a(f"s_waitcnt vmcnt({W-1})")
                        a(f"buffer_load_dwordx4 v{1+(n&1)}, s[{srd}:{srd+3}], s35 offen offset:{n*1024} {pol} lds")
        a(f"s_add_u32 s31, s31, {SLOT}")
        a(f"s_and_b32 s31, s31, {R*SLOT-1}")
    for i in range(R-1):
        a(f"s_add_u32 s32, s46, {i}")
        a(f"s_lshl_b32 s32, s32, 13")
        issue(i*16+16>W if W else False)
    a(f"s_mov_b32 s36, 0")
    a.label("L_lloop")
    a(f"""
    s_waitcnt vmcnt({(R-2)*16}) lgkmcnt(0)
    s_cmp_eq_u32 s36, s49
    s_cbranch_scc1 L_lend
    s_barrier
    s_add_u32 s47, s36, {R-1}      ; n
    s_add_u32 s32, s46, s47
    s_cmp_lt_u32 s47, {NS}
    s_cbranch_scc1 L_static
    """)
    if dyn:
        a(f"""
        s_and_b32 s48, s47, 3
        v_readlane_b32 s32, v20, s48
        s_nop 3
        s_add_u32 s32, s32, {4*NS}
        """)
    else:
        a(f"s_mov_b32 s32, {NTOT}")
    a(f"""
    s_cmp_lt_u32 s32, {NTOT}
    s_cselect_b32 s18, {0 if nomem else 0x200000}, 0
    s_cselect_b32 s22, {0 if nomem else 0x200000}, 0
    s_cselect_b32 s48, s49, s47
    s_min_u32 s49, s49, s48
    v_mov_b32 v21, s49
    ds_write_b32 v22, v21
    """)
    a.label("L_static")
    a("s_lshl_b32 s32, s32, 13")
    issue(True)
    if dyn:
        a(f"""
        s_cmp_eq_u32 s36, {HSI}
        s_cbranch_scc0 L_nohs1
        global_load_dword v25, v23, s[12:13] sc0 sc1
        """)
        a.label("L_nohs1")
        a(f"""
        s_cmp_eq_u32 s36, {HSI+R-1}
        s_cbranch_scc0 L_nohs2
        s_mov_b32 s50, {spin}
        """)
        a.label("L_lhs")
        a(f"""
        v_readfirstlane_b32 s48, v25
        s_sub_u32 s50, s50, 1
        s_cmp_eq_u32 s50, 0
        s_cbranch_scc1 L_nohs2
        s_cmp_lg_u32 s48, 0
        s_cbranch_scc1 L_nohs2
        global_load_dword v25, v23, s[12:13] sc0 sc1
        s_waitcnt vmcnt(0)
        s_branch L_lhs
        """)
        a.label("L_nohs2")
        assert HSI+R-1 < NS-2*(R-1)
        a(f"""
        s_cmp_lt_u32 s36, {NS-2*(R-1)}
        s_cbranch_scc1 L_noclaim
        s_add_u32 s48, s36, {2*(R-1)}
        s_and_b32 s48, s48, 3
        s_lshl_b64 exec, 1, s48
        global_atomic_add v20, v23, v24, s[38:39] sc0
        s_mov_b64 exec, -1
        """)
        a.label("L_noclaim")
    a(f"""
    s_add_u32 s36, s36, 1
    s_branch L_lloop
    """)
    a.label("L_lend")
    a("s_waitcnt vmcnt(0)")
    a("s_endpgm")

    a.label("L_comp")
    a(f"""
    v_and_b32 v4, 15, v3
    v_lshrrev_b32 v5, 4, v3       ; g
    s_lshl_b32 s27, s25, 2
    s_add_u32 s27, s27, s24       ; 4p+w
    s_lshl_b32 s28, s27, 12
    v_lshlrev_b32 v6, 8, v4
    v_lshl_add_u32 v7, v5, 4, v6    ; q*256+g*16
    s_waitcnt lgkmcnt(0)
    s_add_u32 s4, s4, s28
    s_addc_u32 s5, s5, 0
    """)
    for s in range(4):
        a(f"global_load_dwordx4 v[{Q0+4*s}:{Q0+4*s+3}], v7, s[4:5] offset:{64*s}")
    a(f"""
    s_lshl_b32 s30, s25, 10
    s_add_u32 s38, s14, s30
    s_addc_u32 s39, s15, 0
    s_lshl_b32 s30, s25, 2
    s_add_u32 s12, s12, s30
    s_addc_u32 s13, s13, 0        ; s[12:13] = &dbg[p]
    s_or_b32 s30, s26, s24
    s_cmp_lg_u32 s30, 0
    s_cbranch_scc1 L_noclear
    v_mov_b32 v8, 0
    v_mov_b32 v9, 0
    v_mov_b32 v10, 0
    v_mov_b32 v11, 0
    v_lshlrev_b32 v12, 4, v3
    global_store_dwordx4 v12, v[8:11], s[38:39] sc0 sc1
    s_waitcnt vmcnt(0)
    v_mov_b32 v13, 1
    global_store_dword v8, v13, s[12:13] sc0 sc1
    """)
    a.label("L_noclear")
    a(f"""
    v_and_b32 v7, 7, v4
    v_lshlrev_b32 v7, 1, v7
    v_xor_b32 v7, v7, v5
    v_lshlrev_b32 v7, 4, v7
    v_lshl_add_u32 v{KA}, v4, 8, v7
    """)
    for s in range(1,4):
        a(f"v_xor_b32 v{KA+s}, {s<<6}, v{KA}")
    a(f"""
    v_lshrrev_b32 v7, 2, v4        ; r
    v_lshl_add_u32 v7, v5, 2, v7   ; key=4g+r
    v_and_b32 v14, 7, v7           ; k7
    v_and_b32 v15, 3, v3           ; c
    v_lshlrev_b32 v15, 3, v15      ; c*8
    v_lshl_add_u32 v15, v7, 8, v15 ; key*256 + c*8
    v_lshl_add_u32 v15, v14, 5, v15 ; + k7<<5      (db=0)
    s_lshl_b32 s30, s26, 1
    """)
    for t in range(8):
        a(f"s_add_u32 s34, s30, {t}")
        a(f"s_and_b32 s34, s34, 7")
        a(f"s_lshl_b32 s34, s34, 5")
        a(f"v_xor_b32 v{VB+t}, s34, v15")
    for i in range(32): a(f"v_mov_b32 v{O0+i}, 0")
    for i in range(4): a(f"v_mov_b32 v{L0+i}, 0")
    for i in range(4): a(f"v_mov_b32 v{ONE+i}, 0x3f803f80")
    for i in range(32): a(f"v_mov_b32 v{VA+32+i}, 0")
    for i in range(8): a(f"v_mov_b32 v{SS+8+i}, 0xff800000")
    a(f"""
    v_mov_b32 v{VM}, 0xff61b1e6
    v_mov_b32 v{VMC}, 0xff61b1e6
    v_mov_b32 v{VTH}, 0xff61b1e6
    v_mov_b32 v{VMAILA}, {MAIL}
    s_mov_b32 s37, 0x{C_SCALE:x}
    s_mov_b32 s44, 0x{fbits(THR/CF):x}
    s_mov_b32 s36, 0
    s_waitcnt vmcnt(0)
    """)
    if cyc: stamp(6); a("s_waitcnt lgkmcnt(0)")

    def check(sb, lbl):
        S=SS+8*sb
        a(f"""
        v_max3_f32 v{T0}, v{S}, v{S+1}, v{S+2}
        v_max3_f32 v{T1}, v{S+3}, v{S+4}, v{S+5}
        v_max3_f32 v{T0}, v{T0}, v{S+6}, v{S+7}
        v_max_f32 v{T0}, v{T0}, v{T1}
        v_cmp_gt_f32 vcc, v{T0}, v{VTH}
        s_cbranch_vccnz L_rare{lbl}
        """)
        a.label(f"L_ret{lbl}")
    def softmax_B(sb):
        S=SS+8*sb
        for i in range(8): a(f"v_fma_f32 v{S+i}, v{S+i}, s37, -v{VMC}")
        for i in range(8): a(f"v_exp_f32 v{S+i}, v{S+i}")
        for i in range(4): a(f"v_cvt_pk_bf16_f32 v{P0+i}, v{S+2*i}, v{S+2*i+1}")
    def pv(vb, t):
        V=VA+32*vb
        a(f"v_mfma_f32_16x16x32_bf16 v[{O0+4*t}:{O0+4*t+3}], v[{V+4*t}:{V+4*t+3}], v[{P0}:{P0+3}], v[{O0+4*t}:{O0+4*t+3}]")
    def lsum():
        a(f"v_mfma_f32_16x16x32_bf16 v[{L0}:{L0+3}], v[{ONE}:{ONE+3}], v[{P0}:{P0+3}], v[{L0}:{L0+3}]")
    def rare(lbl):
        a.label(f"L_rare{lbl}")
        a(f"""
        v_max_f32 v{T0}, v{T0}, v{VM}
        v_mov_b32 v{T1}, v{T0}
        s_nop 1
        v_permlane16_swap_b32 v{T0}, v{T1}
        v_max_f32 v{T0}, v{T0}, v{T1}
        v_mov_b32 v{T1}, v{T0}
        s_nop 1
        v_permlane32_swap_b32 v{T0}, v{T1}
        v_max_f32 v{VM}, v{T0}, v{T1}
        v_mul_f32 v{T2}, s37, v{VM}
        v_add_f32 v{VTH}, s44, v{VM}
        v_sub_f32 v{T3}, v{VMC}, v{T2}
        v_exp_f32 v{T3}, v{T3}
        v_mov_b32 v{VMC}, v{T2}
        s_nop 0
        """)
        for i in range(4): a(f"v_mul_f32 v{L0+i}, v{T3}, v{L0+i}")
        for i in range(32): a(f"v_mul_f32 v{O0+i}, v{T3}, v{O0+i}")
        a(f"s_branch L_ret{lbl}")

    a.label("L_cloop")
    for r in range(R):
        cur=r&1; prev=cur^1
        base=r*SLOT
        S=SS+8*cur
        V=VA+32*cur
        a("s_barrier")
        a(f"ds_read_b32 v{VMAIL}, v{VMAILA}")
        if not nocomp:
            for kb in range(2):
                for s in range(4):
                    a(f"ds_read_b128 v[{K0+16*kb+4*s}:{K0+16*kb+4*s+3}], v{KA+s} offset:{base+kb*4096}")
            check(prev, r)
            softmax_B(prev)
            def vread(t,hb):
                a(f"ds_read_b64_tr_b16 v[{V+4*t+2*hb}:{V+4*t+2*hb+1}], v{VB+t} offset:{base+8192+hb*4096}")
            def qk(kb,s):
                c = "0" if s==0 else f"v[{S+4*kb}:{S+4*kb+3}]"
                a(f"v_mfma_f32_16x16x32_bf16 v[{S+4*kb}:{S+4*kb+3}], v[{K0+16*kb+4*s}:{K0+16*kb+4*s+3}], v[{Q0+4*s}:{Q0+4*s+3}], {c}")
            vread(0,0); vread(0,1)
            lsum()
            vread(1,0); vread(1,1)
            pv(prev,0)
            vread(2,0); vread(2,1)
            pv(prev,1)
            a("s_waitcnt lgkmcnt(6)")
            for t in range(2,6):
                pv(prev,t); vread(t+1,0); vread(t+1,1)
            pv(prev,6)
            vread(7,0)
            pv(prev,7)
            a("s_waitcnt lgkmcnt(14)")
            vread(7,1)
            for s in range(4): qk(0,s); qk(1,s)
        a(f"s_add_u32 s36, s36, 1")
        a(f"s_waitcnt lgkmcnt(0)")
        a(f"v_cmp_eq_u32 vcc, s36, v{VMAIL}")
        a(f"s_cbranch_vccnz L_drain{cur}")
    a("s_branch L_cloop")
    for par in range(2):
        a.label(f"L_drain{par}")
        if not nocomp:
            a("s_nop 7")
            check(par, f"d{par}")
            softmax_B(par)
            a("s_nop 1")
            lsum()
            for t in range(8): pv(par,t)
        a("s_branch L_epi")
    if not nocomp:
        for r in range(R): rare(r)
        rare("d0"); rare("d1")
    a.label("L_epi")
    stamp(1)
    if cyc: stamp(7)
    a(f"""
    v_lshlrev_b32 v7, 4, v3        ; lane*16
    v_mov_b32 v8, 0
    """)
    if not noepi:
        a(f"""
        s_lshl_b32 s28, s27, 15        ; (4p+w)*16*2048
        s_add_u32 s40, s14, s28
        s_addc_u32 s41, s15, 0
        s_add_u32 s40, s40, {XD_OFF}
        s_addc_u32 s41, s41, 0         ; s[40:41] = X[p][w]
        s_lshl_b32 s28, s27, 12        ; (4p+w)*4*1024
        s_add_u32 s42, s14, s28
        s_addc_u32 s43, s15, 0
        s_add_u32 s42, s42, {ML_OFF}
        s_addc_u32 s43, s43, 0         ; s[42:43] = ML[p][w]
        global_load_dword v{T0}, v8, s[12:13] sc0 sc1
        s_lshl_b32 s28, s26, 10
        v_add_u32 v9, s28, v7
        v_mov_b32 v12, v{VMC}
        v_mov_b32 v13, v{L0}
        v_mov_b32 v14, 0
        v_mov_b32 v15, 0
        global_store_dwordx4 v9, v[12:15], s[42:43] sc0 sc1
        """)
        for u in range(1,4):
            a(f"""
            s_add_u32 s28, s26, {u}
            s_and_b32 s28, s28, 3          ; dst
            s_lshl_b32 s28, s28, 2
            s_add_u32 s28, s28, s26        ; dst*4+j
            s_lshl_b32 s28, s28, 11
            v_add_u32 v10, s28, v7
            global_store_dwordx4 v10, v[{O0+8*u}:{O0+8*u+3}], s[40:41] sc0 sc1
            global_store_dwordx4 v10, v[{O0+8*u+4}:{O0+8*u+7}], s[40:41] offset:1024 sc0 sc1
            """)
        a(f"""
        s_waitcnt vmcnt(0)
        """)
        stamp(2)
        a(f"""
        s_mov_b32 s36, {spin}
        """)
        a.label("L_hs")
        a(f"""
        v_cmp_ne_u32 vcc, 0, v{T0}
        s_cbranch_vccnz L_hs_ok
        global_load_dword v{T0}, v8, s[12:13] sc0 sc1
        s_sub_u32 s36, s36, 1
        s_cmp_eq_u32 s36, 0
        s_waitcnt vmcnt(0)
        s_cbranch_scc0 L_hs
        """)
        a.label("L_hs_ok")
        a(f"""
        s_lshl_b32 s28, s24, 7
        s_add_u32 s28, s28, 128
        s_add_u32 s38, s38, s28
        s_addc_u32 s39, s39, 0
        s_lshl_b32 s28, s26, 2
        v_mov_b32 v10, s28
        v_mov_b32 v11, 1
        global_store_dword v10, v11, s[38:39] sc0 sc1
        s_mov_b32 s36, {spin}
        s_lshl_b32 s45, 1, s26
        s_branch L_poll0
        """)
        a.label("L_poll")
        if psleep: a(f"s_sleep {psleep}")
        a.label("L_poll0")
        a(f"""
        global_load_dwordx4 v[12:15], v8, s[38:39] sc0 sc1
        s_sub_u32 s36, s36, 1
        s_cmp_eq_u32 s36, 0
        s_cbranch_scc1 L_poll_ok
        s_waitcnt vmcnt(0)
        v_lshl_or_b32 v12, v13, 1, v12
        v_lshl_or_b32 v14, v15, 1, v14
        v_lshl_or_b32 v12, v14, 2, v12
        v_or_b32 v12, s45, v12
        v_cmp_eq_u32 vcc, 15, v12
        s_cbranch_vccz L_poll
        """)
        a.label("L_poll_ok")
        stamp(3)
        for u in range(1,4):
            a(f"""
            s_add_u32 s28, s26, {u}
            s_and_b32 s28, s28, 3          ; src
            s_lshl_b32 s29, s28, 10
            v_add_u32 v9, s29, v7
            global_load_dwordx4 v[{XML+4*(u-1)}:{XML+4*(u-1)+3}], v9, s[42:43] sc0 sc1
            s_lshl_b32 s29, s26, 2
            s_add_u32 s28, s28, s29        ; j*4+src
            s_lshl_b32 s28, s28, 11
            v_add_u32 v10, s28, v7
            global_load_dwordx4 v[{X0+8*(u-1)}:{X0+8*(u-1)+3}], v10, s[40:41] sc0 sc1
            global_load_dwordx4 v[{X0+8*(u-1)+4}:{X0+8*(u-1)+7}], v10, s[40:41] offset:1024 sc0 sc1
            """)
        a(f"""
        s_lshl_b32 s28, s27, 12
        s_add_u32 s10, s10, s28
        s_addc_u32 s11, s11, 0
        v_lshlrev_b32 v6, 8, v4        ; q*256
        v_lshl_add_u32 v6, v5, 3, v6   ; + g*8
        s_lshl_b32 s28, s26, 6         ; 2j*32
        v_add_u32 v6, s28, v6
        s_waitcnt vmcnt(0)
        """)
        stamp(4)
        m=[VMC, XML, XML+4, XML+8]
        l=[L0, XML+1, XML+5, XML+9]
        a(f"""
        v_max3_f32 v{T0}, v{m[0]}, v{m[1]}, v{m[2]}
        v_max_f32 v{T0}, v{T0}, v{m[3]}
        v_sub_f32 v12, v{m[0]}, v{T0}
        v_sub_f32 v13, v{m[1]}, v{T0}
        v_sub_f32 v14, v{m[2]}, v{T0}
        v_sub_f32 v15, v{m[3]}, v{T0}
        v_exp_f32 v12, v12
        v_exp_f32 v13, v13
        v_exp_f32 v14, v14
        v_exp_f32 v15, v15
        s_nop 0
        v_mul_f32 v{T1}, v{l[0]}, v12
        v_fmac_f32 v{T1}, v{l[1]}, v13
        v_fmac_f32 v{T1}, v{l[2]}, v14
        v_fmac_f32 v{T1}, v{l[3]}, v15
        v_rcp_f32 v{T3}, v{T1}
        """)
        for i in range(8):
            a(f"v_mul_f32 v{O0+i}, v{O0+i}, v12")
        for i in range(8):
            a(f"v_fmac_f32 v{O0+i}, v{X0+i}, v13")
        for i in range(8):
            a(f"v_fmac_f32 v{O0+i}, v{X0+8+i}, v14")
        for i in range(8):
            a(f"v_fmac_f32 v{O0+i}, v{X0+16+i}, v15")
        a(f"""
        v_fma_f32 v{T2}, -v{T1}, v{T3}, 1.0
        v_fmac_f32 v{T3}, v{T3}, v{T2}
        """)
        for i in range(8):
            a(f"v_mul_f32 v{O0+i}, v{O0+i}, v{T3}")
        a(f"""
        v_cvt_pk_bf16_f32 v12, v{O0}, v{O0+1}
        v_cvt_pk_bf16_f32 v13, v{O0+2}, v{O0+3}
        v_cvt_pk_bf16_f32 v14, v{O0+4}, v{O0+5}
        v_cvt_pk_bf16_f32 v15, v{O0+6}, v{O0+7}
        global_store_dwordx2 v6, v[12:13], s[10:11]
        global_store_dwordx2 v6, v[14:15], s[10:11] offset:32
        """)
    if ts:
        a("s_waitcnt vmcnt(0)")
        stamp(5)
        a(f"""
        s_waitcnt lgkmcnt(0)
        s_cmp_lg_u32 s24, 0
        s_cbranch_scc1 L_done
        s_lshl_b32 s3, s2, 6
        s_add_u32 s14, s14, s3
        s_addc_u32 s15, s15, 0
        s_add_u32 s14, s14, {TS_OFF}
        s_addc_u32 s15, s15, 0
        """)
        if cyc:
            a("s_sub_u32 s72, s74, s72")
            a("s_mov_b32 s73, 0")
        else:
            a("s_mov_b32 s72, s36")
            a("s_mov_b32 s73, 0")
        a("s_mov_b32 s74, 0")
        a("s_mov_b32 s75, 0")
        for i in range(0,8,2):
            a(f"""
            v_mov_b32 v{32+2*i}, s{60+2*i}
            v_mov_b32 v{33+2*i}, s{61+2*i}
            v_mov_b32 v{34+2*i}, s{62+2*i}
            v_mov_b32 v{35+2*i}, s{63+2*i}
            global_store_dwordx4 v8, v[{32+2*i}:{35+2*i}], s[14:15] offset:{8*i}
            """)
    a.label("L_done")
    a("s_endpgm")
    txt=HDR+f"; @launch grid=(256,1,1) block=(320,1,1) lds={lds}\n"+'.amdgcn_target "amdgcn-amd-amdhsa--gfx950"\n.text\n'+kernel_head(NAME)+a.text()+'.section .rodata,"a"\n.p2align 6\n'+kernel_desc(NAME,NVGPR)
    return txt

if __name__=='__main__':
    import ast
    out=sys.argv[1]
    kw={}
    for x in sys.argv[2:]:
        k,v=x.split('=')
        try: v=ast.literal_eval(v)
        except Exception: pass
        kw[k]=v
    open(out,'w').write(gen(**kw))
```

```python
import sys, struct
from asmlib import *

NAME='standalone__gqa_softmax__sampling_kernel'
def fbits(x): return struct.unpack('<I',struct.pack('<f',x))[0]
CF = 0.08838834764831845*1.4426950408889634
C_SCALE = fbits(CF)

Q0=16
K0=32
VA=64
SS=128
P0=144
O0=148
L0=180
ONE=184
KA=188
VB=192
VM=200; VMC=201; VTH=202
T0=203; T1=204; T2=205; T3=206
VMAILA=207; VMAIL=208
NVGPR=212
X0=32
XML=64

XD_OFF=1<<20
ML_OFF=48<<20
TS_OFF=480<<20
R=4
SLOT=16384
MAIL=R*SLOT

def gen(W=24, pol='nt', polv=None, mapping=1, ts=False, spin=1<<16, nomem=False, cyc=False, THR=8.0, lprio=0,
        nodma=False, nocomp=False, NS=48, dyn=True, psleep=2, HSI=8, noepi=False):
    if polv is None: polv=pol
    a=A()
    lds=MAIL+16384+128
    NTOT=256
    if not dyn: NS=64
    def stamp(i):
        if ts:
            a(f"{'s_memtime' if (cyc and i in (6,7)) else 's_memrealtime'} s[{60+2*i}:{61+2*i}]")
    a(f"""
    s_cmp_ge_u32 s2, 256
    s_cbranch_scc1 L_done
    s_load_dwordx4 s[4:7], s[0:1], 0
    s_load_dwordx4 s[8:11], s[0:1], 16
    s_load_dwordx4 s[12:15], s[0:1], 32
    """)
    stamp(0)
    a("""
    v_lshrrev_b32 v2, 6, v0
    v_and_b32 v3, 63, v0
    v_readfirstlane_b32 s24, v2
    """)
    if mapping==0:
        a("""
        s_lshr_b32 s25, s2, 5
        s_lshl_b32 s25, s25, 3
        s_and_b32 s26, s2, 7
        s_or_b32 s25, s25, s26
        s_lshr_b32 s26, s2, 3
        s_and_b32 s26, s26, 3
        """)
    elif mapping==1:
        a("""
        s_lshr_b32 s25, s2, 2
        s_and_b32 s26, s2, 3
        """)
    else:
        a("""
        s_and_b32 s26, s2, 7
        s_lshr_b32 s27, s26, 1
        s_xor_b32 s26, s26, s27
        s_and_b32 s26, s26, 1
        s_lshr_b32 s25, s2, 3
        s_lshl_b32 s25, s25, 1
        s_or_b32 s25, s25, s26
        s_mov_b32 s26, s27
        """)
    a(f"""
    s_cmp_lt_u32 s24, 4
    s_cbranch_scc1 L_comp
    """)
    if lprio: a(f"s_setprio {lprio}")
    a(f"""
    s_lshl_b32 s29, s25, 21
    v_lshrrev_b32 v4, 4, v3      ; rr
    v_and_b32 v5, 15, v3         ; c'
    v_lshlrev_b32 v6, 1, v4      ; f = rr<<1
    v_xor_b32 v5, v5, v6
    v_lshlrev_b32 v5, 4, v5
    v_lshl_add_u32 v1, v4, 8, v5
    v_xor_b32 v2, 0x80, v1
    s_mov_b32 s31, 0
    s_mul_i32 s46, s26, {NS}
    s_mov_b32 s49, 0x7fffffff    ; E
    v_mov_b32 v21, s49
    v_mov_b32 v22, {MAIL}
    v_mov_b32 v23, 0
    v_mov_b32 v24, 1
    v_mov_b32 v20, 0
    ds_write_b32 v22, v21
    s_waitcnt lgkmcnt(0)
    s_add_u32 s16, s6, s29
    s_addc_u32 s17, s7, 0
    s_mov_b32 s18, {0 if nomem else 0x200000}
    s_mov_b32 s19, 0x20000
    s_add_u32 s20, s8, s29
    s_addc_u32 s21, s9, 0
    s_mov_b32 s22, {0 if nomem else 0x200000}
    s_mov_b32 s23, 0x20000
    s_lshl_b32 s30, s25, 10
    s_add_u32 s38, s14, s30
    s_addc_u32 s39, s15, 0
    s_lshl_b32 s30, s25, 2
    s_add_u32 s12, s12, s30
    s_addc_u32 s13, s13, 0        ; s[12:13] = &dbg[p]
    """)
    def issue(win):
        if not nodma:
            for (srd,lo) in [(16,0),(20,8192)]:
                for h in range(2):
                    a(f"s_add_u32 s33, s31, {lo+h*4096}")
                    a(f"s_mov_b32 m0, s33")
                    a(f"s_add_u32 s35, s32, {h*4096}")
                    for n in range(4):
                        if win and W: a(f"s_waitcnt vmcnt({W-1})")
                        a(f"buffer_load_dwordx4 v{1+(n&1)}, s[{srd}:{srd+3}], s35 offen offset:{n*1024} {pol if srd==16 else polv} lds")
        a(f"s_add_u32 s31, s31, {SLOT}")
        a(f"s_and_b32 s31, s31, {R*SLOT-1}")
    for i in range(R-1):
        a(f"s_add_u32 s32, s46, {i}")
        a(f"s_lshl_b32 s32, s32, 13")
        issue(i*16+16>W if W else False)
    a(f"s_mov_b32 s36, 0")
    a.label("L_lloop")
    a(f"""
    s_waitcnt vmcnt({(R-2)*16}) lgkmcnt(0)
    s_cmp_eq_u32 s36, s49
    s_cbranch_scc1 L_lend
    s_barrier
    s_add_u32 s47, s36, {R-1}      ; n
    s_add_u32 s32, s46, s47
    s_cmp_lt_u32 s47, {NS}
    s_cbranch_scc1 L_static
    """)
    if dyn:
        a(f"""
        s_and_b32 s48, s47, 3
        v_readlane_b32 s32, v20, s48
        s_nop 3
        s_add_u32 s32, s32, {4*NS}
        """)
    else:
        a(f"s_mov_b32 s32, {NTOT}")
    a(f"""
    s_cmp_lt_u32 s32, {NTOT}
    s_cselect_b32 s18, {0 if nomem else 0x200000}, 0
    s_cselect_b32 s22, {0 if nomem else 0x200000}, 0
    s_cselect_b32 s48, s49, s47
    s_min_u32 s49, s49, s48
    v_mov_b32 v21, s49
    ds_write_b32 v22, v21
    """)
    a.label("L_static")
    a("s_lshl_b32 s32, s32, 13")
    issue(True)
    if dyn:
        a(f"""
        s_cmp_eq_u32 s36, {HSI}
        s_cbranch_scc0 L_nohs1
        global_load_dword v25, v23, s[12:13] sc0 sc1
        """)
        a.label("L_nohs1")
        a(f"""
        s_cmp_eq_u32 s36, {HSI+R-1}
        s_cbranch_scc0 L_nohs2
        s_mov_b32 s50, {spin}
        """)
        a.label("L_lhs")
        a(f"""
        v_readfirstlane_b32 s48, v25
        s_sub_u32 s50, s50, 1
        s_cmp_eq_u32 s50, 0
        s_cbranch_scc1 L_nohs2
        s_cmp_lg_u32 s48, 0
        s_cbranch_scc1 L_nohs2
        global_load_dword v25, v23, s[12:13] sc0 sc1
        s_waitcnt vmcnt(0)
        s_branch L_lhs
        """)
        a.label("L_nohs2")
        assert HSI+R-1 < NS-2*(R-1)
        a(f"""
        s_cmp_lt_u32 s36, {NS-2*(R-1)}
        s_cbranch_scc1 L_noclaim
        s_add_u32 s48, s36, {2*(R-1)}
        s_and_b32 s48, s48, 3
        s_lshl_b64 exec, 1, s48
        global_atomic_add v20, v23, v24, s[38:39] sc0
        s_mov_b64 exec, -1
        """)
        a.label("L_noclaim")
    a(f"""
    s_add_u32 s36, s36, 1
    s_branch L_lloop
    """)
    a.label("L_lend")
    a("s_waitcnt vmcnt(0)")
    a("s_endpgm")

    a.label("L_comp")
    a(f"""
    v_and_b32 v4, 15, v3
    v_lshrrev_b32 v5, 4, v3       ; g
    s_lshl_b32 s27, s25, 2
    s_add_u32 s27, s27, s24       ; 4p+w
    s_lshl_b32 s28, s27, 12
    v_lshlrev_b32 v6, 8, v4
    v_lshl_add_u32 v7, v5, 4, v6    ; q*256+g*16
    s_waitcnt lgkmcnt(0)
    s_add_u32 s4, s4, s28
    s_addc_u32 s5, s5, 0
    """)
    for s in range(4):
        a(f"global_load_dwordx4 v[{Q0+4*s}:{Q0+4*s+3}], v7, s[4:5] offset:{64*s}")
    a(f"""
    s_lshl_b32 s30, s25, 10
    s_add_u32 s38, s14, s30
    s_addc_u32 s39, s15, 0
    s_lshl_b32 s30, s25, 2
    s_add_u32 s12, s12, s30
    s_addc_u32 s13, s13, 0        ; s[12:13] = &dbg[p]
    s_or_b32 s30, s26, s24
    s_cmp_lg_u32 s30, 0
    s_cbranch_scc1 L_noclear
    v_mov_b32 v8, 0
    v_mov_b32 v9, 0
    v_mov_b32 v10, 0
    v_mov_b32 v11, 0
    v_lshlrev_b32 v12, 4, v3
    global_store_dwordx4 v12, v[8:11], s[38:39] sc0 sc1
    s_waitcnt vmcnt(0)
    v_mov_b32 v13, 1
    global_store_dword v8, v13, s[12:13] sc0 sc1
    """)
    a.label("L_noclear")
    a(f"""
    v_and_b32 v7, 7, v4
    v_lshlrev_b32 v7, 1, v7
    v_xor_b32 v7, v7, v5
    v_lshlrev_b32 v7, 4, v7
    v_lshl_add_u32 v{KA}, v4, 8, v7
    """)
    for s in range(1,4):
        a(f"v_xor_b32 v{KA+s}, {s<<6}, v{KA}")
    a(f"""
    v_lshrrev_b32 v7, 2, v4        ; r
    v_lshl_add_u32 v7, v5, 2, v7   ; key=4g+r
    v_and_b32 v14, 7, v7           ; k7
    v_and_b32 v15, 3, v3           ; c
    v_lshlrev_b32 v15, 3, v15      ; c*8
    v_lshl_add_u32 v15, v7, 8, v15 ; key*256 + c*8
    v_lshl_add_u32 v15, v14, 5, v15 ; + k7<<5      (db=0)
    s_lshl_b32 s30, s26, 1
    """)
    for t in range(8):
        a(f"s_add_u32 s34, s30, {t}")
        a(f"s_and_b32 s34, s34, 7")
        a(f"s_lshl_b32 s34, s34, 5")
        a(f"v_xor_b32 v{VB+t}, s34, v15")
    for i in range(32): a(f"v_mov_b32 v{O0+i}, 0")
    for i in range(4): a(f"v_mov_b32 v{L0+i}, 0")
    for i in range(4): a(f"v_mov_b32 v{ONE+i}, 0x3f803f80")
    for i in range(32): a(f"v_mov_b32 v{VA+32+i}, 0")
    for i in range(8): a(f"v_mov_b32 v{SS+8+i}, 0xff800000")
    a(f"""
    v_mov_b32 v{VM}, 0xff61b1e6
    v_mov_b32 v{VMC}, 0xff61b1e6
    v_mov_b32 v{VTH}, 0xff61b1e6
    v_mov_b32 v{VMAILA}, {MAIL}
    s_mov_b32 s37, 0x{C_SCALE:x}
    s_mov_b32 s44, 0x{fbits(THR/CF):x}
    s_mov_b32 s36, 0
    s_waitcnt vmcnt(0)
    """)
    if cyc: stamp(6); a("s_waitcnt lgkmcnt(0)")

    def check(sb, lbl):
        S=SS+8*sb
        a(f"""
        v_max3_f32 v{T0}, v{S}, v{S+1}, v{S+2}
        v_max3_f32 v{T1}, v{S+3}, v{S+4}, v{S+5}
        v_max3_f32 v{T0}, v{T0}, v{S+6}, v{S+7}
        v_max_f32 v{T0}, v{T0}, v{T1}
        v_cmp_gt_f32 vcc, v{T0}, v{VTH}
        s_cbranch_vccnz L_rare{lbl}
        """)
        a.label(f"L_ret{lbl}")
    def softmax_B(sb):
        S=SS+8*sb
        for i in range(8): a(f"v_fma_f32 v{S+i}, v{S+i}, s37, -v{VMC}")
        for i in range(8): a(f"v_exp_f32 v{S+i}, v{S+i}")
        for i in range(4): a(f"v_cvt_pk_bf16_f32 v{P0+i}, v{S+2*i}, v{S+2*i+1}")
    def pv(vb, t):
        V=VA+32*vb
        a(f"v_mfma_f32_16x16x32_bf16 v[{O0+4*t}:{O0+4*t+3}], v[{V+4*t}:{V+4*t+3}], v[{P0}:{P0+3}], v[{O0+4*t}:{O0+4*t+3}]")
    def lsum():
        a(f"v_mfma_f32_16x16x32_bf16 v[{L0}:{L0+3}], v[{ONE}:{ONE+3}], v[{P0}:{P0+3}], v[{L0}:{L0+3}]")
    def rare(lbl):
        a.label(f"L_rare{lbl}")
        a(f"""
        v_max_f32 v{T0}, v{T0}, v{VM}
        v_mov_b32 v{T1}, v{T0}
        s_nop 1
        v_permlane16_swap_b32 v{T0}, v{T1}
        v_max_f32 v{T0}, v{T0}, v{T1}
        v_mov_b32 v{T1}, v{T0}
        s_nop 1
        v_permlane32_swap_b32 v{T0}, v{T1}
        v_max_f32 v{VM}, v{T0}, v{T1}
        v_mul_f32 v{T2}, s37, v{VM}
        v_add_f32 v{VTH}, s44, v{VM}
        v_sub_f32 v{T3}, v{VMC}, v{T2}
        v_exp_f32 v{T3}, v{T3}
        v_mov_b32 v{VMC}, v{T2}
        s_nop 0
        """)
        for i in range(4): a(f"v_mul_f32 v{L0+i}, v{T3}, v{L0+i}")
        for i in range(32): a(f"v_mul_f32 v{O0+i}, v{T3}, v{O0+i}")
        a(f"s_branch L_ret{lbl}")

    a.label("L_cloop")
    for r in range(R):
        cur=r&1; prev=cur^1
        base=r*SLOT
        S=SS+8*cur
        V=VA+32*cur
        a("s_barrier")
        a(f"ds_read_b32 v{VMAIL}, v{VMAILA}")
        if not nocomp:
            for kb in range(2):
                for s in range(4):
                    a(f"ds_read_b128 v[{K0+16*kb+4*s}:{K0+16*kb+4*s+3}], v{KA+s} offset:{base+kb*4096}")
            check(prev, r)
            softmax_B(prev)
            def vread(t,hb):
                a(f"ds_read_b64_tr_b16 v[{V+4*t+2*hb}:{V+4*t+2*hb+1}], v{VB+t} offset:{base+8192+hb*4096}")
            def qk(kb,s):
                c = "0" if s==0 else f"v[{S+4*kb}:{S+4*kb+3}]"
                a(f"v_mfma_f32_16x16x32_bf16 v[{S+4*kb}:{S+4*kb+3}], v[{K0+16*kb+4*s}:{K0+16*kb+4*s+3}], v[{Q0+4*s}:{Q0+4*s+3}], {c}")
            vread(0,0); vread(0,1)
            lsum()
            vread(1,0); vread(1,1)
            pv(prev,0)
            vread(2,0); vread(2,1)
            pv(prev,1)
            a("s_waitcnt lgkmcnt(6)")
            for t in range(2,6):
                pv(prev,t); vread(t+1,0); vread(t+1,1)
            pv(prev,6)
            vread(7,0)
            pv(prev,7)
            a("s_waitcnt lgkmcnt(14)")
            vread(7,1)
            for s in range(4): qk(0,s); qk(1,s)
        a(f"s_add_u32 s36, s36, 1")
        a(f"s_waitcnt lgkmcnt(0)")
        a(f"v_cmp_eq_u32 vcc, s36, v{VMAIL}")
        a(f"s_cbranch_vccnz L_drain{cur}")
    a("s_branch L_cloop")
    for par in range(2):
        a.label(f"L_drain{par}")
        if not nocomp:
            a("s_nop 7")
            check(par, f"d{par}")
            softmax_B(par)
            a("s_nop 1")
            lsum()
            for t in range(8): pv(par,t)
        a("s_branch L_epi")
    if not nocomp:
        for r in range(R): rare(r)
        rare("d0"); rare("d1")
    a.label("L_epi")
    stamp(1)
    if cyc: stamp(7)
    a(f"""
    v_lshlrev_b32 v7, 4, v3        ; lane*16
    v_mov_b32 v8, 0
    """)
    if not noepi:
        a(f"""
        s_lshl_b32 s28, s27, 15        ; (4p+w)*16*2048
        s_add_u32 s40, s14, s28
        s_addc_u32 s41, s15, 0
        s_add_u32 s40, s40, {XD_OFF}
        s_addc_u32 s41, s41, 0         ; s[40:41] = X[p][w]
        s_lshl_b32 s28, s27, 12        ; (4p+w)*4*1024
        s_add_u32 s42, s14, s28
        s_addc_u32 s43, s15, 0
        s_add_u32 s42, s42, {ML_OFF}
        s_addc_u32 s43, s43, 0         ; s[42:43] = ML[p][w]
        global_load_dword v{T0}, v8, s[12:13] sc0 sc1
        s_lshl_b32 s28, s26, 10
        v_add_u32 v9, s28, v7
        v_mov_b32 v12, v{VMC}
        v_mov_b32 v13, v{L0}
        v_mov_b32 v14, 0
        v_mov_b32 v15, 0
        global_store_dwordx4 v9, v[12:15], s[42:43] sc0 sc1
        """)
        for u in range(1,4):
            a(f"""
            s_add_u32 s28, s26, {u}
            s_and_b32 s28, s28, 3          ; dst
            s_lshl_b32 s28, s28, 2
            s_add_u32 s28, s28, s26        ; dst*4+j
            s_lshl_b32 s28, s28, 11
            v_add_u32 v10, s28, v7
            global_store_dwordx4 v10, v[{O0+8*u}:{O0+8*u+3}], s[40:41] sc0 sc1
            global_store_dwordx4 v10, v[{O0+8*u+4}:{O0+8*u+7}], s[40:41] offset:1024 sc0 sc1
            """)
        a(f"""
        s_waitcnt vmcnt(0)
        """)
        stamp(2)
        a(f"""
        s_mov_b32 s36, {spin}
        """)
        a.label("L_hs")
        a(f"""
        v_cmp_ne_u32 vcc, 0, v{T0}
        s_cbranch_vccnz L_hs_ok
        global_load_dword v{T0}, v8, s[12:13] sc0 sc1
        s_sub_u32 s36, s36, 1
        s_cmp_eq_u32 s36, 0
        s_waitcnt vmcnt(0)
        s_cbranch_scc0 L_hs
        """)
        a.label("L_hs_ok")
        a(f"""
        s_lshl_b32 s28, s24, 7
        s_add_u32 s28, s28, 128
        s_add_u32 s38, s38, s28
        s_addc_u32 s39, s39, 0
        s_lshl_b32 s28, s26, 2
        v_mov_b32 v10, s28
        v_mov_b32 v11, 1
        global_store_dword v10, v11, s[38:39] sc0 sc1
        s_mov_b32 s36, {spin}
        s_lshl_b32 s45, 1, s26
        s_branch L_poll0
        """)
        a.label("L_poll")
        if psleep: a(f"s_sleep {psleep}")
        a.label("L_poll0")
        a(f"""
        global_load_dwordx4 v[12:15], v8, s[38:39] sc0 sc1
        s_sub_u32 s36, s36, 1
        s_cmp_eq_u32 s36, 0
        s_cbranch_scc1 L_poll_ok
        s_waitcnt vmcnt(0)
        v_lshl_or_b32 v12, v13, 1, v12
        v_lshl_or_b32 v14, v15, 1, v14
        v_lshl_or_b32 v12, v14, 2, v12
        v_or_b32 v12, s45, v12
        v_cmp_eq_u32 vcc, 15, v12
        s_cbranch_vccz L_poll
        """)
        a.label("L_poll_ok")
        stamp(3)
        for u in range(1,4):
            a(f"""
            s_add_u32 s28, s26, {u}
            s_and_b32 s28, s28, 3          ; src
            s_lshl_b32 s29, s28, 10
            v_add_u32 v9, s29, v7
            global_load_dwordx4 v[{XML+4*(u-1)}:{XML+4*(u-1)+3}], v9, s[42:43] sc0 sc1
            s_lshl_b32 s29, s26, 2
            s_add_u32 s28, s28, s29        ; j*4+src
            s_lshl_b32 s28, s28, 11
            v_add_u32 v10, s28, v7
            global_load_dwordx4 v[{X0+8*(u-1)}:{X0+8*(u-1)+3}], v10, s[40:41] sc0 sc1
            global_load_dwordx4 v[{X0+8*(u-1)+4}:{X0+8*(u-1)+7}], v10, s[40:41] offset:1024 sc0 sc1
            """)
        a(f"""
        s_lshl_b32 s28, s27, 12
        s_add_u32 s10, s10, s28
        s_addc_u32 s11, s11, 0
        v_lshlrev_b32 v6, 8, v4        ; q*256
        v_lshl_add_u32 v6, v5, 3, v6   ; + g*8
        s_lshl_b32 s28, s26, 6         ; 2j*32
        v_add_u32 v6, s28, v6
        s_waitcnt vmcnt(0)
        """)
        stamp(4)
        m=[VMC, XML, XML+4, XML+8]
        l=[L0, XML+1, XML+5, XML+9]
        a(f"""
        v_max3_f32 v{T0}, v{m[0]}, v{m[1]}, v{m[2]}
        v_max_f32 v{T0}, v{T0}, v{m[3]}
        v_sub_f32 v12, v{m[0]}, v{T0}
        v_sub_f32 v13, v{m[1]}, v{T0}
        v_sub_f32 v14, v{m[2]}, v{T0}
        v_sub_f32 v15, v{m[3]}, v{T0}
        v_exp_f32 v12, v12
        v_exp_f32 v13, v13
        v_exp_f32 v14, v14
        v_exp_f32 v15, v15
        s_nop 0
        v_mul_f32 v{T1}, v{l[0]}, v12
        v_fmac_f32 v{T1}, v{l[1]}, v13
        v_fmac_f32 v{T1}, v{l[2]}, v14
        v_fmac_f32 v{T1}, v{l[3]}, v15
        v_rcp_f32 v{T3}, v{T1}
        """)
        for i in range(8):
            a(f"v_mul_f32 v{O0+i}, v{O0+i}, v12")
        for i in range(8):
            a(f"v_fmac_f32 v{O0+i}, v{X0+i}, v13")
        for i in range(8):
            a(f"v_fmac_f32 v{O0+i}, v{X0+8+i}, v14")
        for i in range(8):
            a(f"v_fmac_f32 v{O0+i}, v{X0+16+i}, v15")
        a(f"""
        v_fma_f32 v{T2}, -v{T1}, v{T3}, 1.0
        v_fmac_f32 v{T3}, v{T3}, v{T2}
        """)
        for i in range(8):
            a(f"v_mul_f32 v{O0+i}, v{O0+i}, v{T3}")
        a(f"""
        v_cvt_pk_bf16_f32 v12, v{O0}, v{O0+1}
        v_cvt_pk_bf16_f32 v13, v{O0+2}, v{O0+3}
        v_cvt_pk_bf16_f32 v14, v{O0+4}, v{O0+5}
        v_cvt_pk_bf16_f32 v15, v{O0+6}, v{O0+7}
        global_store_dwordx2 v6, v[12:13], s[10:11]
        global_store_dwordx2 v6, v[14:15], s[10:11] offset:32
        """)
    if ts:
        a("s_waitcnt vmcnt(0)")
        stamp(5)
        a(f"""
        s_waitcnt lgkmcnt(0)
        s_cmp_lg_u32 s24, 0
        s_cbranch_scc1 L_done
        s_lshl_b32 s3, s2, 6
        s_add_u32 s14, s14, s3
        s_addc_u32 s15, s15, 0
        s_add_u32 s14, s14, {TS_OFF}
        s_addc_u32 s15, s15, 0
        """)
        if cyc:
            a("s_sub_u32 s72, s74, s72")
            a("s_mov_b32 s73, 0")
        else:
            a("s_mov_b32 s72, s36")
            a("s_mov_b32 s73, 0")
        a("s_mov_b32 s74, 0")
        a("s_mov_b32 s75, 0")
        for i in range(0,8,2):
            a(f"""
            v_mov_b32 v{32+2*i}, s{60+2*i}
            v_mov_b32 v{33+2*i}, s{61+2*i}
            v_mov_b32 v{34+2*i}, s{62+2*i}
            v_mov_b32 v{35+2*i}, s{63+2*i}
            global_store_dwordx4 v8, v[{32+2*i}:{35+2*i}], s[14:15] offset:{8*i}
            """)
    a.label("L_done")
    a("s_endpgm")
    txt=HDR+f"; @launch grid=(256,1,1) block=(320,1,1) lds={lds}\n"+'.amdgcn_target "amdgcn-amd-amdhsa--gfx950"\n.text\n'+kernel_head(NAME)+a.text()+'.section .rodata,"a"\n.p2align 6\n'+kernel_desc(NAME,NVGPR)
    return txt

if __name__=='__main__':
    import ast
    out=sys.argv[1]
    kw={}
    for x in sys.argv[2:]:
        k,v=x.split('=')
        try: v=ast.literal_eval(v)
        except Exception: pass
        kw[k]=v
    open(out,'w').write(gen(**kw))
```

```python
import sys, struct
from asmlib import *

NAME='standalone__gqa_softmax__sampling_kernel'
def fbits(x): return struct.unpack('<I',struct.pack('<f',x))[0]
CF = 0.08838834764831845*1.4426950408889634
C_SCALE = fbits(CF)

Q0=16
K0=32
VA=64
SS=128
P0=144
O0=148
L0=180
ONE=184
KA=188
VB=192
VM=200; VMC=201; VTH=202
T0=203; T1=204; T2=205; T3=206
VMAILA=207; VMAIL=208
XAO=210
XAI=213
OADR=216
MLO=217
MLI=218
FLO=221
FLP=222
DUM=223
NVGPR=224
X0=32
G0=44
GM=56
XML=64

XB_OFF=1<<20
XB_ML=16384
XB_FL=16384+1024
TS_OFF=480<<20
R=4
SLOT=16384
MAIL=R*SLOT

def gen(W=24, pol='nt', polv=None, mapping=1, ts=False, spin=1<<16, cyc=False, THR=8.0, lprio=0,
        nodma=False, nocomp=False, NS=48, dyn=True, psleep=1, HSI=None, noepi=False, opol='', csh=10,
        touch=8, xp='sc1', prof=False, lprof=0, nv=None, npoll=1):
    if polv is None: polv=pol
    a=A()
    lds=MAIL+16384+128
    NTOT=256
    if not dyn: NS=64
    if HSI is None: HSI=NS-12
    def stamp(i):
        if ts:
            a(f"{'s_memtime' if (cyc and i in (6,7)) else 's_memrealtime'} s[{60+2*i}:{61+2*i}]")
    a(f"""
    s_cmp_ge_u32 s2, 256
    s_cbranch_scc1 L_done
    s_load_dwordx4 s[4:7], s[0:1], 0
    s_load_dwordx4 s[8:11], s[0:1], 16
    s_load_dwordx4 s[12:15], s[0:1], 32
    """)
    stamp(0)
    a("""
    v_lshrrev_b32 v2, 6, v0
    v_and_b32 v3, 63, v0
    v_readfirstlane_b32 s24, v2
    """)
    if mapping==0:
        a("""
        s_lshr_b32 s25, s2, 5
        s_lshl_b32 s25, s25, 3
        s_and_b32 s26, s2, 7
        s_or_b32 s25, s25, s26
        s_lshr_b32 s26, s2, 3
        s_and_b32 s26, s26, 3
        """)
    elif mapping==1:
        a("""
        s_lshr_b32 s25, s2, 2
        s_and_b32 s26, s2, 3
        """)
    elif mapping==2:
        a("""
        s_and_b32 s26, s2, 7
        s_lshr_b32 s27, s26, 1
        s_xor_b32 s26, s26, s27
        s_and_b32 s26, s26, 1
        s_lshr_b32 s25, s2, 3
        s_lshl_b32 s25, s25, 1
        s_or_b32 s25, s25, s26
        s_mov_b32 s26, s27
        """)
    elif mapping==3:
        a("""
        s_and_b32 s26, s2, 1
        s_lshr_b32 s25, s2, 3
        s_lshl_b32 s25, s25, 1
        s_or_b32 s25, s25, s26
        s_lshr_b32 s26, s2, 1
        s_and_b32 s26, s26, 3
        """)
    a(f"""
    s_cmp_lt_u32 s24, 4
    s_cbranch_scc1 L_comp
    """)
    if lprio: a(f"s_setprio {lprio}")
    a(f"""
    s_lshl_b32 s29, s25, 21
    v_lshrrev_b32 v4, 4, v3      ; rr
    v_and_b32 v5, 15, v3         ; c'
    v_lshlrev_b32 v6, 1, v4      ; f = rr<<1
    v_xor_b32 v5, v5, v6
    v_lshlrev_b32 v5, 4, v5
    v_lshl_add_u32 v1, v4, 8, v5
    v_xor_b32 v2, 0x80, v1
    s_mov_b32 s31, 0
    s_mul_i32 s46, s26, {NS}
    s_mov_b32 s49, 0x7fffffff    ; E
    v_mov_b32 v21, s49
    v_mov_b32 v22, {MAIL}
    v_mov_b32 v23, 0
    v_mov_b32 v24, 1
    v_mov_b32 v20, 0
    ds_write_b32 v22, v21
    s_waitcnt lgkmcnt(0)
    {'s_memrealtime s[72:73]' if lprof else ''}
    s_add_u32 s16, s6, s29
    s_addc_u32 s17, s7, 0
    s_mov_b32 s18, 0x200000
    s_mov_b32 s19, 0x20000
    s_add_u32 s20, s8, s29
    s_addc_u32 s21, s9, 0
    s_mov_b32 s22, 0x200000
    s_mov_b32 s23, 0x20000
    s_lshl_b32 s30, s25, {csh}
    s_add_u32 s38, s14, s30
    s_addc_u32 s39, s15, 0
    """)
    def issue(win):
        if not nodma:
            for (srd,lo) in [(16,0),(20,8192)]:
                for h in range(2):
                    a(f"s_add_u32 s33, s31, {lo+h*4096}")
                    a(f"s_mov_b32 m0, s33")
                    a(f"s_add_u32 s35, s32, {h*4096}")
                    for n in range(4):
                        if win and W: a(f"s_waitcnt vmcnt({W-1})")
                        a(f"buffer_load_dwordx4 v{1+(n&1)}, s[{srd}:{srd+3}], s35 offen offset:{n*1024} {pol if srd==16 else polv} lds")
        a(f"s_add_u32 s31, s31, {SLOT}")
        a(f"s_and_b32 s31, s31, {R*SLOT-1}")
    for i in range(R-1):
        a(f"s_add_u32 s32, s46, {i}")
        a(f"s_lshl_b32 s32, s32, 13")
        issue(i*16+16>W if W else False)
    a(f"s_mov_b32 s36, 0")
    a.label("L_lloop")
    a(f"""
    s_waitcnt vmcnt({(R-2)*16}) lgkmcnt(0)
    s_cmp_eq_u32 s36, s49
    s_cbranch_scc1 L_lend
    """)
    if lprof:
        a(f"""
        s_cmp_eq_u32 s36, {lprof-1}
        s_cbranch_scc0 L_lp
        s_memrealtime s[74:75]
        s_waitcnt lgkmcnt(0)
        """)
        a.label("L_lp")
    a(f"""
    s_barrier
    s_add_u32 s47, s36, {R-1}      ; n
    s_add_u32 s32, s46, s47
    s_cmp_lt_u32 s47, {NS}
    s_cbranch_scc1 L_static
    """)
    if dyn:
        a(f"""
        s_and_b32 s48, s47, 3
        v_readlane_b32 s32, v20, s48
        s_nop 3
        s_add_u32 s32, s32, {4*NS}
        """)
    else:
        a(f"s_mov_b32 s32, {NTOT}")
    a(f"""
    s_cmp_lt_u32 s32, {NTOT}
    s_cselect_b32 s18, 0x200000, 0
    s_cselect_b32 s22, 0x200000, 0
    s_cselect_b32 s48, s49, s47
    s_min_u32 s49, s49, s48
    v_mov_b32 v21, s49
    ds_write_b32 v22, v21
    """)
    a.label("L_static")
    a("s_lshl_b32 s32, s32, 13")
    issue(True)
    a(f"""
    s_cmp_eq_u32 s36, {HSI}
    s_cbranch_scc0 L_nohs1
    global_load_dwordx2 v[26:27], v23, s[12:13] {xp}
    """)
    a.label("L_nohs1")
    a(f"""
    s_cmp_eq_u32 s36, {HSI+R-1}
    s_cbranch_scc0 L_nohs2
    s_mov_b32 s50, {spin}
    """)
    a.label("L_lhs")
    a(f"""
    v_readfirstlane_b32 s48, v26
    s_sub_u32 s50, s50, 1
    s_cmp_eq_u32 s50, 0
    s_cbranch_scc1 L_hsok
    s_cmp_lg_u32 s48, 0
    s_cbranch_scc1 L_hsok
    global_load_dwordx2 v[26:27], v23, s[12:13] {xp}
    s_waitcnt vmcnt(0)
    s_branch L_lhs
    """)
    a.label("L_hsok")
    a("ds_write_b64 v22, v[26:27] offset:8")
    a.label("L_nohs2")
    if dyn:
        assert HSI+R-1 < NS-2*(R-1)
        a(f"""
        s_cmp_lt_u32 s36, {NS-2*(R-1)}
        s_cbranch_scc1 L_noclaim
        s_add_u32 s48, s36, {2*(R-1)}
        s_and_b32 s48, s48, 3
        s_lshl_b64 exec, 1, s48
        global_atomic_add v20, v23, v24, s[38:39] sc0
        s_mov_b64 exec, -1
        """)
        a.label("L_noclaim")
    a(f"""
    s_add_u32 s36, s36, 1
    s_branch L_lloop
    """)
    a.label("L_lend")
    a("s_waitcnt vmcnt(0)")
    if lprof:
        a(f"""
        s_lshl_b32 s3, s2, 6
        s_add_u32 s14, s14, s3
        s_addc_u32 s15, s15, 0
        s_add_u32 s14, s14, {TS_OFF}
        s_addc_u32 s15, s15, 0
        v_mov_b32 v32, s72
        v_mov_b32 v33, s73
        v_mov_b32 v34, s74
        v_mov_b32 v35, s75
        v_mov_b32 v8, 0
        global_store_dwordx4 v8, v[32:35], s[14:15] offset:48
        s_waitcnt vmcnt(0)
        """)
    a("s_endpgm")

    a.label("L_comp")
    a(f"""
    v_and_b32 v4, 15, v3
    v_lshrrev_b32 v5, 4, v3       ; g
    s_lshl_b32 s27, s25, 2
    s_add_u32 s27, s27, s24       ; 4p+w
    s_lshl_b32 s28, s27, 12
    v_lshlrev_b32 v6, 8, v4
    v_lshl_add_u32 v7, v5, 4, v6    ; q*256+g*16
    s_waitcnt lgkmcnt(0)
    s_add_u32 s4, s4, s28
    s_addc_u32 s5, s5, 0
    """)
    for s in range(4):
        a(f"global_load_dwordx4 v[{Q0+4*s}:{Q0+4*s+3}], v7, s[4:5] offset:{64*s}")
    a(f"""
    s_or_b32 s30, s2, s24
    s_cmp_lg_u32 s30, 0
    s_cbranch_scc1 L_noclear
    s_memrealtime s[50:51]
    v_mov_b32 v8, 0
    v_mov_b32 v9, 0
    v_mov_b32 v10, 0
    v_mov_b32 v11, 0
    v_lshlrev_b32 v12, {csh}, v3
    global_store_dwordx4 v12, v[8:11], s[14:15] {xp}
    s_waitcnt vmcnt(0) lgkmcnt(0)
    s_or_b32 s50, s50, 1
    v_mov_b32 v14, s50
    v_mov_b32 v15, s51
    s_mov_b64 exec, 1
    global_store_dwordx2 v8, v[14:15], s[12:13] {xp}
    s_mov_b64 exec, -1
    """)
    a.label("L_noclear")
    a(f"""
    s_lshl_b32 s28, s27, 15        ; (4p+w)*32KiB
    s_add_u32 s40, s14, s28
    s_addc_u32 s41, s15, 0
    s_add_u32 s40, s40, {XB_OFF}
    s_addc_u32 s41, s41, 0
    s_lshl_b32 s28, s27, 12
    s_add_u32 s10, s10, s28
    s_addc_u32 s11, s11, 0
    v_lshlrev_b32 v7, 4, v3        ; lane*16
    v_lshlrev_b32 v6, 8, v4        ; q*256
    v_lshl_add_u32 v6, v5, 3, v6   ; + g*8
    s_lshl_b32 s28, s26, 6         ; 2j*32
    v_add_u32 v{OADR}, s28, v6
    s_lshl_b32 s28, s26, 8
    s_add_u32 s28, s28, {XB_ML}
    v_lshl_add_u32 v{MLO}, v4, 4, s28
    s_lshl_b32 s28, s26, 7
    s_add_u32 s28, s28, {XB_FL}
    v_mov_b32 v{FLO}, s28
    v_and_b32 v8, 3, v3
    v_lshlrev_b32 v8, 7, v8
    v_add_u32 v{FLP}, {XB_FL}, v8
    """)
    for u in range(1,4):
        a(f"""
        s_add_u32 s28, s26, {u}
        s_and_b32 s28, s28, 3
        s_lshl_b32 s29, s28, 2
        s_add_u32 s29, s29, s26
        s_lshl_b32 s29, s29, 10
        v_add_u32 v{XAO+u-1}, s29, v7
        s_lshl_b32 s29, s26, 2
        s_add_u32 s29, s29, s28
        s_lshl_b32 s29, s29, 10
        v_add_u32 v{XAI+u-1}, s29, v7
        s_lshl_b32 s29, s28, 8
        s_add_u32 s29, s29, {XB_ML}
        v_lshl_add_u32 v{MLI+u-1}, v4, 4, s29
        """)
    a(f"""
    v_and_b32 v7, 7, v4
    v_lshlrev_b32 v7, 1, v7
    v_xor_b32 v7, v7, v5
    v_lshlrev_b32 v7, 4, v7
    v_lshl_add_u32 v{KA}, v4, 8, v7
    """)
    for s in range(1,4):
        a(f"v_xor_b32 v{KA+s}, {s<<6}, v{KA}")
    a(f"""
    v_lshrrev_b32 v7, 2, v4        ; r
    v_lshl_add_u32 v7, v5, 2, v7   ; key=4g+r
    v_and_b32 v14, 7, v7           ; k7
    v_and_b32 v15, 3, v3           ; c
    v_lshlrev_b32 v15, 3, v15      ; c*8
    v_lshl_add_u32 v15, v7, 8, v15 ; key*256 + c*8
    v_lshl_add_u32 v15, v14, 5, v15 ; + k7<<5      (db=0)
    s_lshl_b32 s30, s26, 1
    """)
    for t in range(8):
        a(f"s_add_u32 s34, s30, {t}")
        a(f"s_and_b32 s34, s34, 7")
        a(f"s_lshl_b32 s34, s34, 5")
        a(f"v_xor_b32 v{VB+t}, s34, v15")
    for i in range(32): a(f"v_mov_b32 v{O0+i}, 0")
    for i in range(4): a(f"v_mov_b32 v{L0+i}, 0")
    for i in range(4): a(f"v_mov_b32 v{ONE+i}, 0x3f803f80")
    for i in range(32): a(f"v_mov_b32 v{VA+32+i}, 0")
    for i in range(8): a(f"v_mov_b32 v{SS+8+i}, 0xff800000")
    a(f"""
    v_mov_b32 v{VM}, 0xff61b1e6
    v_mov_b32 v{VMC}, 0xff61b1e6
    v_mov_b32 v{VTH}, 0xff61b1e6
    v_mov_b32 v{VMAILA}, {MAIL}
    s_mov_b32 s37, 0x{C_SCALE:x}
    s_mov_b32 s44, 0x{fbits(THR/CF):x}
    s_mov_b32 s36, 0
    s_lshl_b32 s45, 1, s26
    s_waitcnt vmcnt(0)
    """)
    if cyc: stamp(6); a("s_waitcnt lgkmcnt(0)")

    def check(sb, lbl):
        S=SS+8*sb
        a(f"""
        v_max3_f32 v{T0}, v{S}, v{S+1}, v{S+2}
        v_max3_f32 v{T1}, v{S+3}, v{S+4}, v{S+5}
        v_max3_f32 v{T0}, v{T0}, v{S+6}, v{S+7}
        v_max_f32 v{T0}, v{T0}, v{T1}
        v_cmp_gt_f32 vcc, v{T0}, v{VTH}
        s_cbranch_vccnz L_rare{lbl}
        """)
        a.label(f"L_ret{lbl}")
    def softmax_B(sb):
        S=SS+8*sb
        for i in range(8): a(f"v_fma_f32 v{S+i}, v{S+i}, s37, -v{VMC}")
        for i in range(8): a(f"v_exp_f32 v{S+i}, v{S+i}")
        for i in range(4): a(f"v_cvt_pk_bf16_f32 v{P0+i}, v{S+2*i}, v{S+2*i+1}")
    def pv(vb, t):
        V=VA+32*vb
        a(f"v_mfma_f32_16x16x32_bf16 v[{O0+4*t}:{O0+4*t+3}], v[{V+4*t}:{V+4*t+3}], v[{P0}:{P0+3}], v[{O0+4*t}:{O0+4*t+3}]")
    def lsum():
        a(f"v_mfma_f32_16x16x32_bf16 v[{L0}:{L0+3}], v[{ONE}:{ONE+3}], v[{P0}:{P0+3}], v[{L0}:{L0+3}]")
    def rare(lbl):
        a.label(f"L_rare{lbl}")
        a(f"""
        v_max_f32 v{T0}, v{T0}, v{VM}
        v_mov_b32 v{T1}, v{T0}
        s_nop 1
        v_permlane16_swap_b32 v{T0}, v{T1}
        v_max_f32 v{T0}, v{T0}, v{T1}
        v_mov_b32 v{T1}, v{T0}
        s_nop 1
        v_permlane32_swap_b32 v{T0}, v{T1}
        v_max_f32 v{VM}, v{T0}, v{T1}
        v_mul_f32 v{T2}, s37, v{VM}
        v_add_f32 v{VTH}, s44, v{VM}
        v_sub_f32 v{T3}, v{VMC}, v{T2}
        v_exp_f32 v{T3}, v{T3}
        v_mov_b32 v{VMC}, v{T2}
        s_nop 0
        """)
        for i in range(4): a(f"v_mul_f32 v{L0+i}, v{T3}, v{L0+i}")
        for i in range(32): a(f"v_mul_f32 v{O0+i}, v{T3}, v{O0+i}")
        a(f"s_branch L_ret{lbl}")

    a.label("L_cloop")
    for r in range(R):
        cur=r&1; prev=cur^1
        base=r*SLOT
        S=SS+8*cur
        V=VA+32*cur
        a("s_barrier")
        if prof and r==0:
            for (it,sl) in ((4,3),(24,6),(44,7)):
                a(f"s_cmp_eq_u32 s36, {it}")
                a(f"s_cbranch_scc0 L_pr{sl}")
                a(f"s_memrealtime s[{60+2*sl}:{61+2*sl}]")
                a("s_waitcnt lgkmcnt(0)")
                a.label(f"L_pr{sl}")
        if r==0 and touch and not noepi:
            a(f"s_cmp_eq_u32 s36, {touch}")
            a("s_cbranch_scc1 L_touch")
            a.label("L_touchret")
        a(f"ds_read_b32 v{VMAIL}, v{VMAILA}")
        if not nocomp:
            for kb in range(2):
                for s in range(4):
                    a(f"ds_read_b128 v[{K0+16*kb+4*s}:{K0+16*kb+4*s+3}], v{KA+s} offset:{base+kb*4096}")
            check(prev, r)
            softmax_B(prev)
            def vread(t,hb):
                a(f"ds_read_b64_tr_b16 v[{V+4*t+2*hb}:{V+4*t+2*hb+1}], v{VB+t} offset:{base+8192+hb*4096}")
            def qk(kb,s):
                c = "0" if s==0 else f"v[{S+4*kb}:{S+4*kb+3}]"
                a(f"v_mfma_f32_16x16x32_bf16 v[{S+4*kb}:{S+4*kb+3}], v[{K0+16*kb+4*s}:{K0+16*kb+4*s+3}], v[{Q0+4*s}:{Q0+4*s+3}], {c}")
            vread(0,0); vread(0,1)
            lsum()
            vread(1,0); vread(1,1)
            pv(prev,0)
            vread(2,0); vread(2,1)
            pv(prev,1)
            a("s_waitcnt lgkmcnt(6)")
            for t in range(2,6):
                pv(prev,t); vread(t+1,0); vread(t+1,1)
            pv(prev,6)
            vread(7,0)
            pv(prev,7)
            a("s_waitcnt lgkmcnt(14)")
            vread(7,1)
            for s in range(4): qk(0,s); qk(1,s)
        a(f"s_add_u32 s36, s36, 1")
        a(f"s_waitcnt lgkmcnt(0)")
        a(f"v_cmp_eq_u32 vcc, s36, v{VMAIL}")
        a(f"s_cbranch_vccnz L_drain{cur}")
    a("s_branch L_cloop")
    if touch and not noepi:
        assert touch%R==0
        a.label("L_touch")
        a(f"""
        s_mov_b64 exec, 1
        global_load_dword v{DUM}, v{FLO}, s[40:41]
        global_load_dword v{DUM}, v{OADR}, s[10:11]
        s_mov_b64 exec, -1
        s_branch L_touchret
        """)
    for par in range(2):
        a.label(f"L_drain{par}")
        a(f"ds_read_b64 v[{VMAIL}:{VMAIL+1}], v{VMAILA} offset:8")
        if not nocomp:
            a("s_nop 7")
            check(par, f"d{par}")
            softmax_B(par)
            a("s_nop 1")
            lsum()
            for t in (2,3,4,5,6,7,0,1): pv(par,t)
        a("s_branch L_epi")
    if not nocomp:
        for r in range(R): rare(r)
        rare("d0"); rare("d1")
    a.label("L_epi")
    stamp(1)
    if cyc: stamp(7)
    if not noepi:
        o=O0+8
        a("s_nop 4")
        a(f"v_max3_f32 v{T0}, |v{o}|, |v{o+1}|, |v{o+2}|")
        a(f"v_max3_f32 v{T1}, |v{o+3}|, |v{o+4}|, |v{o+5}|")
        k=6; t=0
        while k<24:
            tr=(T0,T1)[t&1]
            a(f"v_max3_f32 v{tr}, v{tr}, |v{o+k}|, |v{o+k+1}|")
            k+=2; t+=1
        a(f"""
        v_max_f32 v{T0}, v{T0}, v{T1}
        v_mov_b32 v{GM}, v{VMC}
        v_mov_b32 v{T1}, v{T0}
        v_mov_b32 v{GM+1}, v{L0}
        s_nop 0
        v_permlane16_swap_b32 v{T0}, v{T1}
        v_max_f32 v{T0}, v{T0}, v{T1}
        v_mov_b32 v{T1}, v{T0}
        v_mov_b32 v{GM+3}, 0
        s_nop 0
        v_permlane32_swap_b32 v{T0}, v{T1}
        v_max_f32 v{T0}, v{T0}, v{T1}
        v_frexp_exp_i32_f32 v{T1}, v{T0}
        v_sub_u32 v{T1}, 15, v{T1}
        v_min_i32 v{GM+2}, 0x7e, v{T1}
        v_ldexp_f32 v12, 1.0, v{GM+2}
        """)
        for u in range(1,4):
            ob=O0+8*u; g=G0+4*(u-1)
            for i in range(4):
                a(f"v_pk_mul_f32 v[{ob+2*i}:{ob+2*i+1}], v[{ob+2*i}:{ob+2*i+1}], v[12:13] op_sel_hi:[1,0]")
            for i in range(4):
                a(f"v_cvt_pk_f16_f32 v{g+i}, v{ob+2*i}, v{ob+2*i+1}")
            a(f"global_store_dwordx4 v{XAO+u-1}, v[{g}:{g+3}], s[40:41] {xp}")
        a(f"""
        s_mov_b64 exec, 0xffff
        global_store_dwordx4 v{MLO}, v[{GM}:{GM+3}], s[40:41] {xp}
        s_mov_b64 exec, 1
        s_waitcnt vmcnt(0) lgkmcnt(0)
        global_store_dwordx2 v{FLO}, v[{VMAIL}:{VMAIL+1}], s[40:41] {xp}
        """)
        stamp(2)
        a(f"""
        s_mov_b64 exec, 15
        s_mov_b32 s36, {spin}
        """)
        a("s_branch L_poll0")
        a.label("L_poll")
        if psleep: a(f"s_sleep {psleep}")
        a.label("L_poll0")
        a(f"""
        global_load_dwordx2 v[12:13], v{FLP}, s[40:41] {xp}
        s_sub_u32 s36, s36, 1
        s_cmp_eq_u32 s36, 0
        s_cbranch_scc1 L_poll_ok
        s_waitcnt vmcnt(0)
        v_cmp_eq_u64 vcc, v[12:13], v[{VMAIL}:{VMAIL+1}]
        s_or_b32 vcc_lo, vcc_lo, s45
        s_cmp_eq_u32 vcc_lo, 15
        s_cbranch_scc0 L_poll
        """)
        a.label("L_poll_ok")
        a("s_mov_b64 exec, -1")
        stamp(3)
        for u in range(1,4):
            a(f"""
            global_load_dwordx4 v[{XML+4*(u-1)}:{XML+4*(u-1)+3}], v{MLI+u-1}, s[40:41] {xp}
            global_load_dwordx4 v[{X0+4*(u-1)}:{X0+4*(u-1)+3}], v{XAI+u-1}, s[40:41] {xp}
            """)
        a("s_waitcnt vmcnt(0)")
        stamp(4)
        m=[VMC, XML, XML+4, XML+8]
        l=[L0, XML+1, XML+5, XML+9]
        kk=[None, XML+2, XML+6, XML+10]
        a(f"""
        v_max3_f32 v{T0}, v{m[0]}, v{m[1]}, v{m[2]}
        v_max_f32 v{T0}, v{T0}, v{m[3]}
        v_sub_f32 v12, v{m[0]}, v{T0}
        v_sub_f32 v13, v{m[1]}, v{T0}
        v_sub_f32 v14, v{m[2]}, v{T0}
        v_sub_f32 v15, v{m[3]}, v{T0}
        v_exp_f32 v12, v12
        v_exp_f32 v13, v13
        v_exp_f32 v14, v14
        v_exp_f32 v15, v15
        v_sub_u32 v{kk[1]}, 0, v{kk[1]}
        v_sub_u32 v{kk[2]}, 0, v{kk[2]}
        v_sub_u32 v{kk[3]}, 0, v{kk[3]}
        v_mul_f32 v{T1}, v{l[0]}, v12
        v_fmac_f32 v{T1}, v{l[1]}, v13
        v_fmac_f32 v{T1}, v{l[2]}, v14
        v_fmac_f32 v{T1}, v{l[3]}, v15
        v_rcp_f32 v{T3}, v{T1}
        v_ldexp_f32 v13, v13, v{kk[1]}
        v_ldexp_f32 v14, v14, v{kk[2]}
        v_ldexp_f32 v15, v15, v{kk[3]}
        """)
        for i in range(8):
            a(f"v_mul_f32 v{O0+i}, v{O0+i}, v12")
        for u in range(1,4):
            for i in range(8):
                a(f"v_fma_mix_f32 v{O0+i}, v{X0+4*(u-1)+i//2}, v{12+u}, v{O0+i} op_sel:[{i&1},0,0] op_sel_hi:[1,0,0]")
        a(f"""
        v_fma_f32 v{T2}, -v{T1}, v{T3}, 1.0
        v_fmac_f32 v{T3}, v{T3}, v{T2}
        """)
        for i in range(8):
            a(f"v_mul_f32 v{O0+i}, v{O0+i}, v{T3}")
        a(f"""
        v_cvt_pk_bf16_f32 v12, v{O0}, v{O0+1}
        v_cvt_pk_bf16_f32 v13, v{O0+2}, v{O0+3}
        v_cvt_pk_bf16_f32 v14, v{O0+4}, v{O0+5}
        v_cvt_pk_bf16_f32 v15, v{O0+6}, v{O0+7}
        global_store_dwordx2 v{OADR}, v[12:13], s[10:11] {opol}
        global_store_dwordx2 v{OADR}, v[14:15], s[10:11] offset:32 {opol}
        """)
    if ts:
        a("s_waitcnt vmcnt(0)")
        a("v_mov_b32 v8, 0")
        stamp(5)
        a(f"""
        s_waitcnt lgkmcnt(0)
        s_cmp_lg_u32 s24, 0
        s_cbranch_scc1 L_done
        s_lshl_b32 s3, s2, 6
        s_add_u32 s14, s14, s3
        s_addc_u32 s15, s15, 0
        s_add_u32 s14, s14, {TS_OFF}
        s_addc_u32 s15, s15, 0
        """)
        if cyc:
            a("s_sub_u32 s72, s74, s72")
            a("s_mov_b32 s73, 0")
        elif not prof:
            a("s_mov_b32 s72, s36")
            a("s_mov_b32 s73, 0")
        if not prof:
            a("s_mov_b32 s74, 0")
            a("s_mov_b32 s75, 0")
        for i in range(0,6 if lprof else 8,2):
            a(f"""
            v_mov_b32 v{32+2*i}, s{60+2*i}
            v_mov_b32 v{33+2*i}, s{61+2*i}
            v_mov_b32 v{34+2*i}, s{62+2*i}
            v_mov_b32 v{35+2*i}, s{63+2*i}
            global_store_dwordx4 v8, v[{32+2*i}:{35+2*i}], s[14:15] offset:{8*i}
            """)
    a.label("L_done")
    a("s_endpgm")
    txt=HDR+f"; @launch grid=(256,1,1) block=(320,1,1) lds={lds}\n"+'.amdgcn_target "amdgcn-amd-amdhsa--gfx950"\n.text\n'+kernel_head(NAME)+a.text()+'.section .rodata,"a"\n.p2align 6\n'+kernel_desc(NAME,nv or NVGPR)
    return txt

if __name__=='__main__':
    import ast
    out=sys.argv[1]
    kw={}
    for x in sys.argv[2:]:
        k,v=x.split('=')
        try: v=ast.literal_eval(v)
        except Exception: pass
        kw[k]=v
    open(out,'w').write(gen(**kw))
```

```python
import sys, struct
from asmlib import *

NAME='standalone__gqa_softmax__sampling_kernel'
def fbits(x): return struct.unpack('<I',struct.pack('<f',x))[0]
CF = 0.08838834764831845*1.4426950408889634
C_SCALE = fbits(CF)

Q0=16
K0=32
VA=64
SS=128
P0=144
O0=148
L0=180
ONE=184
KA=188
VB=192
VM=200; VMC=201; VTH=202
T0=203; T1=204; T2=205; T3=206
VMAILA=207; VMAIL=208
XAO=210
XAI=213
OADR=216
MLO=217
MLI=218
FLO=221
FLP=222
DUM=223
NVGPR=224
X0=32
G0=44
GM=56
XML=64

XB_OFF=1<<20
XB_ML=16384
XB_FL=16384+1024
TS_OFF=480<<20
R=4
SLOT=16384
MAIL=R*SLOT

def gen(W=24, pol='nt', polv=None, mapping=1, ts=False, spin=1<<16, cyc=False, THR=8.0, lprio=0,
        nodma=False, nocomp=False, NS=48, dyn=True, psleep=1, HSI=None, noepi=False, opol='', csh=10,
        touch=8, xp='sc1', prof=False, lprof=0, nv=None, npoll=1, xr=None, gx=None, pat='r0 r1 t0 t1 n0 n1 n2 t2 t3 t4 t5 t6 t7'):
    if polv is None: polv=pol
    toks=pat.split(); assert sorted(toks)==sorted(['r0','r1','n0','n1','n2']+[f't{i}' for i in range(8)])
    pos={x:8+i for i,x in enumerate(toks)}
    def noff(n): return sum(((n>>b)&1)<<pos[f'n{b}'] for b in range(3))
    runs=[]
    for b in range(8):
        if runs and runs[-1][0]+runs[-1][1]==b and runs[-1][2]+runs[-1][1]==pos[f't{b}']:
            runs[-1]=(runs[-1][0],runs[-1][1]+1,runs[-1][2])
        else: runs.append((b,1,pos[f't{b}']))
    a=A()
    lds=MAIL+16384+128
    NTOT=256
    if not dyn: NS=64
    if HSI is None: HSI=NS-12
    if xr: assert NS%(xr[1]+1)==0
    def stamp(i):
        if ts:
            a(f"{'s_memtime' if (cyc and i in (6,7)) else 's_memrealtime'} s[{60+2*i}:{61+2*i}]")
    a(f"""
    s_cmp_ge_u32 s2, 256
    s_cbranch_scc1 L_done
    s_load_dwordx4 s[4:7], s[0:1], 0
    s_load_dwordx4 s[8:11], s[0:1], 16
    s_load_dwordx4 s[12:15], s[0:1], 32
    """)
    stamp(0)
    a("""
    v_lshrrev_b32 v2, 6, v0
    v_and_b32 v3, 63, v0
    v_readfirstlane_b32 s24, v2
    """)
    if mapping==0:
        a("""
        s_lshr_b32 s25, s2, 5
        s_lshl_b32 s25, s25, 3
        s_and_b32 s26, s2, 7
        s_or_b32 s25, s25, s26
        s_lshr_b32 s26, s2, 3
        s_and_b32 s26, s26, 3
        """)
    elif mapping==1:
        a("""
        s_lshr_b32 s25, s2, 2
        s_and_b32 s26, s2, 3
        """)
    elif mapping==2:
        a("""
        s_and_b32 s26, s2, 7
        s_lshr_b32 s27, s26, 1
        s_xor_b32 s26, s26, s27
        s_and_b32 s26, s26, 1
        s_lshr_b32 s25, s2, 3
        s_lshl_b32 s25, s25, 1
        s_or_b32 s25, s25, s26
        s_mov_b32 s26, s27
        """)
    elif mapping==3:
        a("""
        s_and_b32 s26, s2, 1
        s_lshr_b32 s25, s2, 3
        s_lshl_b32 s25, s25, 1
        s_or_b32 s25, s25, s26
        s_lshr_b32 s26, s2, 1
        s_and_b32 s26, s26, 3
        """)
    a(f"""
    s_cmp_lt_u32 s24, 4
    s_cbranch_scc1 L_comp
    """)
    if lprio: a(f"s_setprio {lprio}")
    a(f"""
    s_lshl_b32 s29, s25, 21
    v_lshrrev_b32 v4, 4, v3      ; rr
    v_and_b32 v5, 15, v3         ; c'
    v_lshlrev_b32 v6, 1, v4      ; f = rr<<1
    v_xor_b32 v5, v5, v6
    v_lshlrev_b32 v5, 4, v5
    v_and_b32 v6, 1, v4
    v_lshl_add_u32 v5, v6, {pos['r0']}, v5
    v_lshrrev_b32 v6, 1, v4
    v_lshl_add_u32 v1, v6, {pos['r1']}, v5
    v_xor_b32 v2, 0x80, v1
    s_mov_b32 s31, 0
    s_mul_i32 s46, s26, {NS}
    {f's_bfe_u32 s51, s2, 0x{((xr[1].bit_length())<<16)|xr[0]:x}' if xr else ''}
    s_mov_b32 s49, 0x7fffffff    ; E
    s_mov_b32 s55, 0
    v_mov_b32 v21, s49
    v_mov_b32 v22, {MAIL}
    v_mov_b32 v23, 0
    v_mov_b32 v24, 1
    v_mov_b32 v20, 0
    ds_write_b32 v22, v21
    """)
    for (sh,mk,ls) in (gx or []):
        a(f"""
        s_lshr_b32 s52, s25, {sh}
        s_and_b32 s52, s52, {mk}
        s_lshl_b32 s52, s52, {ls}
        s_xor_b32 s55, s55, s52
        """)
    a(f"""
    s_waitcnt lgkmcnt(0)
    {'s_memrealtime s[72:73]' if lprof else ''}
    s_add_u32 s16, s6, s29
    s_addc_u32 s17, s7, 0
    s_mov_b32 s18, 0x200000
    s_mov_b32 s19, 0x20000
    s_add_u32 s20, s8, s29
    s_addc_u32 s21, s9, 0
    s_mov_b32 s22, 0x200000
    s_mov_b32 s23, 0x20000
    s_lshl_b32 s30, s25, {csh}
    s_add_u32 s38, s14, s30
    s_addc_u32 s39, s15, 0
    """)
    def tile_off():
        if gx: a("s_xor_b32 s32, s32, s55")
        if len(runs)==1:
            a(f"s_lshl_b32 s32, s32, {runs[0][2]}")
        else:
            for i,(b,ln,ab) in enumerate(runs):
                d = "s52" if i==0 else "s53"
                a(f"s_bfe_u32 {d}, s32, 0x{(ln<<16)|b:x}")
                a(f"s_lshl_b32 {d}, {d}, {ab}")
                if i: a("s_add_u32 s52, s52, s53")
            a("s_mov_b32 s32, s52")
    def issue(win):
        if not nodma:
            for (srd,lo) in [(16,0),(20,8192)]:
                for h in range(2):
                    a(f"s_add_u32 s33, s31, {lo+h*4096}")
                    a(f"s_mov_b32 m0, s33")
                    lin = all(noff(4*h+n)==noff(4*h)+n*1024 for n in range(4))
                    if lin: a(f"s_add_u32 s35, s32, {noff(4*h)}")
                    for n in range(4):
                        assert noff(4*h+n)-n*1024>=0
                        if not lin: a(f"s_add_u32 s35, s32, {noff(4*h+n)-n*1024}")
                        if win and W: a(f"s_waitcnt vmcnt({W-1})")
                        a(f"buffer_load_dwordx4 v{1+(n&1)}, s[{srd}:{srd+3}], s35 offen offset:{n*1024} {pol if srd==16 else polv} lds")
        a(f"s_add_u32 s31, s31, {SLOT}")
        a(f"s_and_b32 s31, s31, {R*SLOT-1}")
    for i in range(R-1):
        if xr:
            a(f"s_xor_b32 s32, s51, {i}")
            a(f"s_add_u32 s32, s32, s46")
        else: a(f"s_add_u32 s32, s46, {i}")
        tile_off()
        issue(i*16+16>W if W else False)
    a(f"s_mov_b32 s36, 0")
    a.label("L_lloop")
    a(f"""
    s_waitcnt vmcnt({(R-2)*16}) lgkmcnt(0)
    s_cmp_eq_u32 s36, s49
    s_cbranch_scc1 L_lend
    """)
    if lprof:
        a(f"""
        s_cmp_eq_u32 s36, {lprof-1}
        s_cbranch_scc0 L_lp
        s_memrealtime s[74:75]
        s_waitcnt lgkmcnt(0)
        """)
        a.label("L_lp")
    a(f"""
    s_barrier
    s_add_u32 s47, s36, {R-1}      ; n
    {'s_xor_b32 s32, s51, s47' if xr else 's_mov_b32 s32, s47'}
    s_add_u32 s32, s46, s32
    s_cmp_lt_u32 s47, {NS}
    s_cbranch_scc1 L_static
    """)
    if dyn:
        a(f"""
        s_and_b32 s48, s47, 3
        v_readlane_b32 s32, v20, s48
        s_nop 3
        s_add_u32 s32, s32, {4*NS}
        """)
    else:
        a(f"s_mov_b32 s32, {NTOT}")
    a(f"""
    s_cmp_lt_u32 s32, {NTOT}
    s_cselect_b32 s18, 0x200000, 0
    s_cselect_b32 s22, 0x200000, 0
    s_cselect_b32 s48, s49, s47
    s_min_u32 s49, s49, s48
    v_mov_b32 v21, s49
    ds_write_b32 v22, v21
    """)
    a.label("L_static")
    tile_off()
    issue(True)
    a(f"""
    s_cmp_eq_u32 s36, {HSI}
    s_cbranch_scc0 L_nohs1
    global_load_dwordx2 v[26:27], v23, s[12:13] {xp}
    """)
    a.label("L_nohs1")
    a(f"""
    s_cmp_eq_u32 s36, {HSI+R-1}
    s_cbranch_scc0 L_nohs2
    s_mov_b32 s50, {spin}
    """)
    a.label("L_lhs")
    a(f"""
    v_readfirstlane_b32 s48, v26
    s_sub_u32 s50, s50, 1
    s_cmp_eq_u32 s50, 0
    s_cbranch_scc1 L_hsok
    s_cmp_lg_u32 s48, 0
    s_cbranch_scc1 L_hsok
    global_load_dwordx2 v[26:27], v23, s[12:13] {xp}
    s_waitcnt vmcnt(0)
    s_branch L_lhs
    """)
    a.label("L_hsok")
    a("ds_write_b64 v22, v[26:27] offset:8")
    a.label("L_nohs2")
    if dyn:
        assert HSI+R-1 < NS-2*(R-1)
        a(f"""
        s_cmp_lt_u32 s36, {NS-2*(R-1)}
        s_cbranch_scc1 L_noclaim
        s_add_u32 s48, s36, {2*(R-1)}
        s_and_b32 s48, s48, 3
        s_lshl_b64 exec, 1, s48
        global_atomic_add v20, v23, v24, s[38:39] sc0
        s_mov_b64 exec, -1
        """)
        a.label("L_noclaim")
    a(f"""
    s_add_u32 s36, s36, 1
    s_branch L_lloop
    """)
    a.label("L_lend")
    a("s_waitcnt vmcnt(0)")
    if lprof:
        a(f"""
        s_lshl_b32 s3, s2, 6
        s_add_u32 s14, s14, s3
        s_addc_u32 s15, s15, 0
        s_add_u32 s14, s14, {TS_OFF}
        s_addc_u32 s15, s15, 0
        v_mov_b32 v32, s72
        v_mov_b32 v33, s73
        v_mov_b32 v34, s74
        v_mov_b32 v35, s75
        v_mov_b32 v8, 0
        global_store_dwordx4 v8, v[32:35], s[14:15] offset:48
        s_waitcnt vmcnt(0)
        """)
    a("s_endpgm")

    a.label("L_comp")
    a(f"""
    v_and_b32 v4, 15, v3
    v_lshrrev_b32 v5, 4, v3       ; g
    s_lshl_b32 s27, s25, 2
    s_add_u32 s27, s27, s24       ; 4p+w
    s_lshl_b32 s28, s27, 12
    v_lshlrev_b32 v6, 8, v4
    v_lshl_add_u32 v7, v5, 4, v6    ; q*256+g*16
    s_waitcnt lgkmcnt(0)
    s_add_u32 s4, s4, s28
    s_addc_u32 s5, s5, 0
    """)
    for s in range(4):
        a(f"global_load_dwordx4 v[{Q0+4*s}:{Q0+4*s+3}], v7, s[4:5] offset:{64*s}")
    a(f"""
    s_or_b32 s30, s2, s24
    s_cmp_lg_u32 s30, 0
    s_cbranch_scc1 L_noclear
    s_memrealtime s[50:51]
    v_mov_b32 v8, 0
    v_mov_b32 v9, 0
    v_mov_b32 v10, 0
    v_mov_b32 v11, 0
    v_lshlrev_b32 v12, {csh}, v3
    global_store_dwordx4 v12, v[8:11], s[14:15] {xp}
    s_waitcnt vmcnt(0) lgkmcnt(0)
    s_or_b32 s50, s50, 1
    v_mov_b32 v14, s50
    v_mov_b32 v15, s51
    s_mov_b64 exec, 1
    global_store_dwordx2 v8, v[14:15], s[12:13] {xp}
    s_mov_b64 exec, -1
    """)
    a.label("L_noclear")
    a(f"""
    s_lshl_b32 s28, s27, 15        ; (4p+w)*32KiB
    s_add_u32 s40, s14, s28
    s_addc_u32 s41, s15, 0
    s_add_u32 s40, s40, {XB_OFF}
    s_addc_u32 s41, s41, 0
    s_lshl_b32 s28, s27, 12
    s_add_u32 s10, s10, s28
    s_addc_u32 s11, s11, 0
    v_lshlrev_b32 v7, 4, v3        ; lane*16
    v_lshlrev_b32 v6, 8, v4        ; q*256
    v_lshl_add_u32 v6, v5, 3, v6   ; + g*8
    s_lshl_b32 s28, s26, 6         ; 2j*32
    v_add_u32 v{OADR}, s28, v6
    s_lshl_b32 s28, s26, 8
    s_add_u32 s28, s28, {XB_ML}
    v_lshl_add_u32 v{MLO}, v4, 4, s28
    s_lshl_b32 s28, s26, 7
    s_add_u32 s28, s28, {XB_FL}
    v_mov_b32 v{FLO}, s28
    v_and_b32 v8, 3, v3
    v_lshlrev_b32 v8, 7, v8
    v_add_u32 v{FLP}, {XB_FL}, v8
    """)
    for u in range(1,4):
        a(f"""
        s_add_u32 s28, s26, {u}
        s_and_b32 s28, s28, 3
        s_lshl_b32 s29, s28, 2
        s_add_u32 s29, s29, s26
        s_lshl_b32 s29, s29, 10
        v_add_u32 v{XAO+u-1}, s29, v7
        s_lshl_b32 s29, s26, 2
        s_add_u32 s29, s29, s28
        s_lshl_b32 s29, s29, 10
        v_add_u32 v{XAI+u-1}, s29, v7
        s_lshl_b32 s29, s28, 8
        s_add_u32 s29, s29, {XB_ML}
        v_lshl_add_u32 v{MLI+u-1}, v4, 4, s29
        """)
    a(f"""
    v_and_b32 v7, 7, v4
    v_lshlrev_b32 v7, 1, v7
    v_xor_b32 v7, v7, v5
    v_lshlrev_b32 v7, 4, v7
    v_lshl_add_u32 v{KA}, v4, 8, v7
    """)
    for s in range(1,4):
        a(f"v_xor_b32 v{KA+s}, {s<<6}, v{KA}")
    a(f"""
    v_lshrrev_b32 v7, 2, v4        ; r
    v_lshl_add_u32 v7, v5, 2, v7   ; key=4g+r
    v_and_b32 v14, 7, v7           ; k7
    v_and_b32 v15, 3, v3           ; c
    v_lshlrev_b32 v15, 3, v15      ; c*8
    v_lshl_add_u32 v15, v7, 8, v15 ; key*256 + c*8
    v_lshl_add_u32 v15, v14, 5, v15 ; + k7<<5      (db=0)
    s_lshl_b32 s30, s26, 1
    """)
    for t in range(8):
        a(f"s_add_u32 s34, s30, {t}")
        a(f"s_and_b32 s34, s34, 7")
        a(f"s_lshl_b32 s34, s34, 5")
        a(f"v_xor_b32 v{VB+t}, s34, v15")
    for i in range(32): a(f"v_mov_b32 v{O0+i}, 0")
    for i in range(4): a(f"v_mov_b32 v{L0+i}, 0")
    for i in range(4): a(f"v_mov_b32 v{ONE+i}, 0x3f803f80")
    for i in range(32): a(f"v_mov_b32 v{VA+32+i}, 0")
    for i in range(8): a(f"v_mov_b32 v{SS+8+i}, 0xff800000")
    a(f"""
    v_mov_b32 v{VM}, 0xff61b1e6
    v_mov_b32 v{VMC}, 0xff61b1e6
    v_mov_b32 v{VTH}, 0xff61b1e6
    v_mov_b32 v{VMAILA}, {MAIL}
    s_mov_b32 s37, 0x{C_SCALE:x}
    s_mov_b32 s44, 0x{fbits(THR/CF):x}
    s_mov_b32 s36, 0
    s_lshl_b32 s45, 1, s26
    s_waitcnt vmcnt(0)
    """)
    if cyc: stamp(6); a("s_waitcnt lgkmcnt(0)")

    def check(sb, lbl):
        S=SS+8*sb
        a(f"""
        v_max3_f32 v{T0}, v{S}, v{S+1}, v{S+2}
        v_max3_f32 v{T1}, v{S+3}, v{S+4}, v{S+5}
        v_max3_f32 v{T0}, v{T0}, v{S+6}, v{S+7}
        v_max_f32 v{T0}, v{T0}, v{T1}
        v_cmp_gt_f32 vcc, v{T0}, v{VTH}
        s_cbranch_vccnz L_rare{lbl}
        """)
        a.label(f"L_ret{lbl}")
    def softmax_B(sb):
        S=SS+8*sb
        for i in range(8): a(f"v_fma_f32 v{S+i}, v{S+i}, s37, -v{VMC}")
        for i in range(8): a(f"v_exp_f32 v{S+i}, v{S+i}")
        for i in range(4): a(f"v_cvt_pk_bf16_f32 v{P0+i}, v{S+2*i}, v{S+2*i+1}")
    def pv(vb, t):
        V=VA+32*vb
        a(f"v_mfma_f32_16x16x32_bf16 v[{O0+4*t}:{O0+4*t+3}], v[{V+4*t}:{V+4*t+3}], v[{P0}:{P0+3}], v[{O0+4*t}:{O0+4*t+3}]")
    def lsum():
        a(f"v_mfma_f32_16x16x32_bf16 v[{L0}:{L0+3}], v[{ONE}:{ONE+3}], v[{P0}:{P0+3}], v[{L0}:{L0+3}]")
    def rare(lbl):
        a.label(f"L_rare{lbl}")
        a(f"""
        v_max_f32 v{T0}, v{T0}, v{VM}
        v_mov_b32 v{T1}, v{T0}
        s_nop 1
        v_permlane16_swap_b32 v{T0}, v{T1}
        v_max_f32 v{T0}, v{T0}, v{T1}
        v_mov_b32 v{T1}, v{T0}
        s_nop 1
        v_permlane32_swap_b32 v{T0}, v{T1}
        v_max_f32 v{VM}, v{T0}, v{T1}
        v_mul_f32 v{T2}, s37, v{VM}
        v_add_f32 v{VTH}, s44, v{VM}
        v_sub_f32 v{T3}, v{VMC}, v{T2}
        v_exp_f32 v{T3}, v{T3}
        v_mov_b32 v{VMC}, v{T2}
        s_nop 0
        """)
        for i in range(4): a(f"v_mul_f32 v{L0+i}, v{T3}, v{L0+i}")
        for i in range(32): a(f"v_mul_f32 v{O0+i}, v{T3}, v{O0+i}")
        a(f"s_branch L_ret{lbl}")

    a.label("L_cloop")
    for r in range(R):
        cur=r&1; prev=cur^1
        base=r*SLOT
        S=SS+8*cur
        V=VA+32*cur
        a("s_barrier")
        if prof and r==0:
            for (it,sl) in ((4,3),(24,6),(44,7)):
                a(f"s_cmp_eq_u32 s36, {it}")
                a(f"s_cbranch_scc0 L_pr{sl}")
                a(f"s_memrealtime s[{60+2*sl}:{61+2*sl}]")
                a("s_waitcnt lgkmcnt(0)")
                a.label(f"L_pr{sl}")
        if r==0 and touch and not noepi:
            a(f"s_cmp_eq_u32 s36, {touch}")
            a("s_cbranch_scc1 L_touch")
            a.label("L_touchret")
        a(f"ds_read_b32 v{VMAIL}, v{VMAILA}")
        if not nocomp:
            for kb in range(2):
                for s in range(4):
                    a(f"ds_read_b128 v[{K0+16*kb+4*s}:{K0+16*kb+4*s+3}], v{KA+s} offset:{base+kb*4096}")
            check(prev, r)
            softmax_B(prev)
            def vread(t,hb):
                a(f"ds_read_b64_tr_b16 v[{V+4*t+2*hb}:{V+4*t+2*hb+1}], v{VB+t} offset:{base+8192+hb*4096}")
            def qk(kb,s):
                c = "0" if s==0 else f"v[{S+4*kb}:{S+4*kb+3}]"
                a(f"v_mfma_f32_16x16x32_bf16 v[{S+4*kb}:{S+4*kb+3}], v[{K0+16*kb+4*s}:{K0+16*kb+4*s+3}], v[{Q0+4*s}:{Q0+4*s+3}], {c}")
            vread(0,0); vread(0,1)
            lsum()
            vread(1,0); vread(1,1)
            pv(prev,0)
            vread(2,0); vread(2,1)
            pv(prev,1)
            a("s_waitcnt lgkmcnt(6)")
            for t in range(2,6):
                pv(prev,t); vread(t+1,0); vread(t+1,1)
            pv(prev,6)
            vread(7,0)
            pv(prev,7)
            a("s_waitcnt lgkmcnt(14)")
            vread(7,1)
            for s in range(4): qk(0,s); qk(1,s)
        a(f"s_add_u32 s36, s36, 1")
        a(f"s_waitcnt lgkmcnt(0)")
        a(f"v_cmp_eq_u32 vcc, s36, v{VMAIL}")
        a(f"s_cbranch_vccnz L_drain{cur}")
    a("s_branch L_cloop")
    if touch and not noepi:
        assert touch%R==0
        a.label("L_touch")
        a(f"""
        s_mov_b64 exec, 1
        global_load_dword v{DUM}, v{FLO}, s[40:41]
        global_load_dword v{DUM}, v{OADR}, s[10:11]
        s_mov_b64 exec, -1
        s_branch L_touchret
        """)
    for par in range(2):
        a.label(f"L_drain{par}")
        a(f"ds_read_b64 v[{VMAIL}:{VMAIL+1}], v{VMAILA} offset:8")
        if not nocomp:
            a("s_nop 7")
            check(par, f"d{par}")
            softmax_B(par)
            a("s_nop 1")
            lsum()
            for t in (2,3,4,5,6,7,0,1): pv(par,t)
        a("s_branch L_epi")
    if not nocomp:
        for r in range(R): rare(r)
        rare("d0"); rare("d1")
    a.label("L_epi")
    stamp(1)
    if cyc: stamp(7)
    if not noepi:
        o=O0+8
        a("s_nop 4")
        a(f"v_max3_f32 v{T0}, |v{o}|, |v{o+1}|, |v{o+2}|")
        a(f"v_max3_f32 v{T1}, |v{o+3}|, |v{o+4}|, |v{o+5}|")
        k=6; t=0
        while k<24:
            tr=(T0,T1)[t&1]
            a(f"v_max3_f32 v{tr}, v{tr}, |v{o+k}|, |v{o+k+1}|")
            k+=2; t+=1
        a(f"""
        v_max_f32 v{T0}, v{T0}, v{T1}
        v_mov_b32 v{GM}, v{VMC}
        v_mov_b32 v{T1}, v{T0}
        v_mov_b32 v{GM+1}, v{L0}
        s_nop 0
        v_permlane16_swap_b32 v{T0}, v{T1}
        v_max_f32 v{T0}, v{T0}, v{T1}
        v_mov_b32 v{T1}, v{T0}
        v_mov_b32 v{GM+3}, 0
        s_nop 0
        v_permlane32_swap_b32 v{T0}, v{T1}
        v_max_f32 v{T0}, v{T0}, v{T1}
        v_frexp_exp_i32_f32 v{T1}, v{T0}
        v_sub_u32 v{T1}, 15, v{T1}
        v_min_i32 v{GM+2}, 0x7e, v{T1}
        v_ldexp_f32 v12, 1.0, v{GM+2}
        """)
        for u in range(1,4):
            ob=O0+8*u; g=G0+4*(u-1)
            for i in range(4):
                a(f"v_pk_mul_f32 v[{ob+2*i}:{ob+2*i+1}], v[{ob+2*i}:{ob+2*i+1}], v[12:13] op_sel_hi:[1,0]")
            for i in range(4):
                a(f"v_cvt_pk_f16_f32 v{g+i}, v{ob+2*i}, v{ob+2*i+1}")
            a(f"global_store_dwordx4 v{XAO+u-1}, v[{g}:{g+3}], s[40:41] {xp}")
        a(f"""
        s_mov_b64 exec, 0xffff
        global_store_dwordx4 v{MLO}, v[{GM}:{GM+3}], s[40:41] {xp}
        s_mov_b64 exec, 1
        s_waitcnt vmcnt(0) lgkmcnt(0)
        global_store_dwordx2 v{FLO}, v[{VMAIL}:{VMAIL+1}], s[40:41] {xp}
        """)
        stamp(2)
        a(f"""
        s_mov_b64 exec, 15
        s_mov_b32 s36, {spin}
        """)
        a("s_branch L_poll0")
        a.label("L_poll")
        if psleep: a(f"s_sleep {psleep}")
        a.label("L_poll0")
        a(f"""
        global_load_dwordx2 v[12:13], v{FLP}, s[40:41] {xp}
        s_sub_u32 s36, s36, 1
        s_cmp_eq_u32 s36, 0
        s_cbranch_scc1 L_poll_ok
        s_waitcnt vmcnt(0)
        v_cmp_eq_u64 vcc, v[12:13], v[{VMAIL}:{VMAIL+1}]
        s_or_b32 vcc_lo, vcc_lo, s45
        s_cmp_eq_u32 vcc_lo, 15
        s_cbranch_scc0 L_poll
        """)
        a.label("L_poll_ok")
        a("s_mov_b64 exec, -1")
        stamp(3)
        for u in range(1,4):
            a(f"""
            global_load_dwordx4 v[{XML+4*(u-1)}:{XML+4*(u-1)+3}], v{MLI+u-1}, s[40:41] {xp}
            global_load_dwordx4 v[{X0+4*(u-1)}:{X0+4*(u-1)+3}], v{XAI+u-1}, s[40:41] {xp}
            """)
        a("s_waitcnt vmcnt(0)")
        stamp(4)
        m=[VMC, XML, XML+4, XML+8]
        l=[L0, XML+1, XML+5, XML+9]
        kk=[None, XML+2, XML+6, XML+10]
        a(f"""
        v_max3_f32 v{T0}, v{m[0]}, v{m[1]}, v{m[2]}
        v_max_f32 v{T0}, v{T0}, v{m[3]}
        v_sub_f32 v12, v{m[0]}, v{T0}
        v_sub_f32 v13, v{m[1]}, v{T0}
        v_sub_f32 v14, v{m[2]}, v{T0}
        v_sub_f32 v15, v{m[3]}, v{T0}
        v_exp_f32 v12, v12
        v_exp_f32 v13, v13
        v_exp_f32 v14, v14
        v_exp_f32 v15, v15
        v_sub_u32 v{kk[1]}, 0, v{kk[1]}
        v_sub_u32 v{kk[2]}, 0, v{kk[2]}
        v_sub_u32 v{kk[3]}, 0, v{kk[3]}
        v_mul_f32 v{T1}, v{l[0]}, v12
        v_fmac_f32 v{T1}, v{l[1]}, v13
        v_fmac_f32 v{T1}, v{l[2]}, v14
        v_fmac_f32 v{T1}, v{l[3]}, v15
        v_rcp_f32 v{T3}, v{T1}
        v_ldexp_f32 v13, v13, v{kk[1]}
        v_ldexp_f32 v14, v14, v{kk[2]}
        v_ldexp_f32 v15, v15, v{kk[3]}
        """)
        for i in range(8):
            a(f"v_mul_f32 v{O0+i}, v{O0+i}, v12")
        for u in range(1,4):
            for i in range(8):
                a(f"v_fma_mix_f32 v{O0+i}, v{X0+4*(u-1)+i//2}, v{12+u}, v{O0+i} op_sel:[{i&1},0,0] op_sel_hi:[1,0,0]")
        a(f"""
        v_fma_f32 v{T2}, -v{T1}, v{T3}, 1.0
        v_fmac_f32 v{T3}, v{T3}, v{T2}
        """)
        for i in range(8):
            a(f"v_mul_f32 v{O0+i}, v{O0+i}, v{T3}")
        a(f"""
        v_cvt_pk_bf16_f32 v12, v{O0}, v{O0+1}
        v_cvt_pk_bf16_f32 v13, v{O0+2}, v{O0+3}
        v_cvt_pk_bf16_f32 v14, v{O0+4}, v{O0+5}
        v_cvt_pk_bf16_f32 v15, v{O0+6}, v{O0+7}
        global_store_dwordx2 v{OADR}, v[12:13], s[10:11] {opol}
        global_store_dwordx2 v{OADR}, v[14:15], s[10:11] offset:32 {opol}
        """)
    if ts:
        a("s_waitcnt vmcnt(0)")
        a("v_mov_b32 v8, 0")
        stamp(5)
        a(f"""
        s_waitcnt lgkmcnt(0)
        s_cmp_lg_u32 s24, 0
        s_cbranch_scc1 L_done
        s_lshl_b32 s3, s2, 6
        s_add_u32 s14, s14, s3
        s_addc_u32 s15, s15, 0
        s_add_u32 s14, s14, {TS_OFF}
        s_addc_u32 s15, s15, 0
        """)
        if cyc:
            a("s_sub_u32 s72, s74, s72")
            a("s_mov_b32 s73, 0")
        elif not prof:
            a("s_mov_b32 s72, s36")
            a("s_mov_b32 s73, 0")
        if not prof:
            a("s_mov_b32 s74, 0")
            a("s_mov_b32 s75, 0")
        for i in range(0,6 if lprof else 8,2):
            a(f"""
            v_mov_b32 v{32+2*i}, s{60+2*i}
            v_mov_b32 v{33+2*i}, s{61+2*i}
            v_mov_b32 v{34+2*i}, s{62+2*i}
            v_mov_b32 v{35+2*i}, s{63+2*i}
            global_store_dwordx4 v8, v[{32+2*i}:{35+2*i}], s[14:15] offset:{8*i}
            """)
    a.label("L_done")
    a("s_endpgm")
    txt=HDR+f"; @launch grid=(256,1,1) block=(320,1,1) lds={lds}\n"+'.amdgcn_target "amdgcn-amd-amdhsa--gfx950"\n.text\n'+kernel_head(NAME)+a.text()+'.section .rodata,"a"\n.p2align 6\n'+kernel_desc(NAME,nv or NVGPR)
    return txt

if __name__=='__main__':
    import ast
    out=sys.argv[1]
    kw={}
    for x in sys.argv[2:]:
        k,v=x.split('=')
        try: v=ast.literal_eval(v)
        except Exception: pass
        kw[k]=v
    open(out,'w').write(gen(**kw))
```

```python
import sys, struct
from asmlib import *

NAME='standalone__gqa_softmax__sampling_kernel'
def fbits(x): return struct.unpack('<I',struct.pack('<f',x))[0]
CF = 0.08838834764831845*1.4426950408889634
C_SCALE = fbits(CF)

Q0=16
K0=32
VA=64
SS=128
P0=144
O0=148
L0=180
ONE=184
KA=188
VB=192
VM=200; VMC=201; VTH=202
T0=203; T1=204; T2=205; T3=206
VMAILA=207; VMAIL=208
XAO=210
XAI=213
OADR=216
MLO=217
MLI=218
FLO=221
FLP=222
DUM=223
NVGPR=224
X0=32
G0=44
GM=56
XML=64

XB_OFF=1<<20
XB_ML=16384
XB_FL=16384+1024
TS_OFF=480<<20
R=4
SLOT=16384
MAIL=R*SLOT

def gen(W=24, pol='nt', polv=None, mapping=1, ts=False, spin=1<<16, cyc=False, THR=8.0, lprio=0,
        nodma=False, nocomp=False, NS=48, dyn=True, psleep=1, HSI=None, noepi=False, opol='', csh=10,
        touch=8, xp='sc1', prof=False, lprof=0, nv=None, npoll=1, xr=None, gx=None, pat='r0 r1 t0 t1 n0 n1 n2 t2 t3 t4 t5 t6 t7'):
    if polv is None: polv=pol
    toks=pat.split(); assert sorted(toks)==sorted(['r0','r1','n0','n1','n2']+[f't{i}' for i in range(8)])
    pos={x:8+i for i,x in enumerate(toks)}
    def noff(n): return sum(((n>>b)&1)<<pos[f'n{b}'] for b in range(3))
    runs=[]
    for b in range(8):
        if runs and runs[-1][0]+runs[-1][1]==b and runs[-1][2]+runs[-1][1]==pos[f't{b}']:
            runs[-1]=(runs[-1][0],runs[-1][1]+1,runs[-1][2])
        else: runs.append((b,1,pos[f't{b}']))
    a=A()
    lds=MAIL+16384+128
    NTOT=256
    if not dyn: NS=64
    if HSI is None: HSI=NS-12
    if xr: assert NS%(xr[1]+1)==0
    def stamp(i):
        if ts:
            a(f"{'s_memtime' if (cyc and i in (6,7)) else 's_memrealtime'} s[{60+2*i}:{61+2*i}]")
    a(f"""
    s_cmp_ge_u32 s2, 256
    s_cbranch_scc1 L_done
    s_load_dwordx4 s[4:7], s[0:1], 0
    s_load_dwordx4 s[8:11], s[0:1], 16
    s_load_dwordx4 s[12:15], s[0:1], 32
    """)
    stamp(0)
    a("""
    v_lshrrev_b32 v2, 6, v0
    v_and_b32 v3, 63, v0
    v_readfirstlane_b32 s24, v2
    """)
    if mapping==0:
        a("""
        s_lshr_b32 s25, s2, 5
        s_lshl_b32 s25, s25, 3
        s_and_b32 s26, s2, 7
        s_or_b32 s25, s25, s26
        s_lshr_b32 s26, s2, 3
        s_and_b32 s26, s26, 3
        """)
    elif mapping==1:
        a("""
        s_lshr_b32 s25, s2, 2
        s_and_b32 s26, s2, 3
        """)
    elif mapping==2:
        a("""
        s_and_b32 s26, s2, 7
        s_lshr_b32 s27, s26, 1
        s_xor_b32 s26, s26, s27
        s_and_b32 s26, s26, 1
        s_lshr_b32 s25, s2, 3
        s_lshl_b32 s25, s25, 1
        s_or_b32 s25, s25, s26
        s_mov_b32 s26, s27
        """)
    elif mapping==3:
        a("""
        s_and_b32 s26, s2, 1
        s_lshr_b32 s25, s2, 3
        s_lshl_b32 s25, s25, 1
        s_or_b32 s25, s25, s26
        s_lshr_b32 s26, s2, 1
        s_and_b32 s26, s26, 3
        """)
    a(f"""
    s_cmp_lt_u32 s24, 4
    s_cbranch_scc1 L_comp
    """)
    if lprio: a(f"s_setprio {lprio}")
    a(f"""
    s_lshl_b32 s29, s25, 21
    v_lshrrev_b32 v4, 4, v3      ; rr
    v_and_b32 v5, 15, v3         ; c'
    v_lshlrev_b32 v6, 1, v4      ; f = rr<<1
    v_xor_b32 v5, v5, v6
    v_lshlrev_b32 v5, 4, v5
    v_and_b32 v6, 1, v4
    v_lshl_add_u32 v5, v6, {pos['r0']}, v5
    v_lshrrev_b32 v6, 1, v4
    v_lshl_add_u32 v1, v6, {pos['r1']}, v5
    v_xor_b32 v2, 0x80, v1
    s_mov_b32 s31, 0
    s_mul_i32 s46, s26, {NS}
    {f's_bfe_u32 s51, s2, 0x{((xr[1].bit_length())<<16)|xr[0]:x}' if xr else ''}
    s_mov_b32 s49, 0x7fffffff    ; E
    s_mov_b32 s55, 0
    v_mov_b32 v21, s49
    v_mov_b32 v22, {MAIL}
    v_mov_b32 v23, 0
    v_mov_b32 v24, 1
    v_mov_b32 v20, 0
    ds_write_b32 v22, v21
    """)
    for (sh,mk,ls) in (gx or []):
        a(f"""
        s_lshr_b32 s52, s25, {sh}
        s_and_b32 s52, s52, {mk}
        s_lshl_b32 s52, s52, {ls}
        s_xor_b32 s55, s55, s52
        """)
    a(f"""
    s_waitcnt lgkmcnt(0)
    {'s_memrealtime s[72:73]' if lprof else ''}
    s_add_u32 s16, s6, s29
    s_addc_u32 s17, s7, 0
    s_mov_b32 s18, 0x200000
    s_mov_b32 s19, 0x20000
    s_add_u32 s20, s8, s29
    s_addc_u32 s21, s9, 0
    s_mov_b32 s22, 0x200000
    s_mov_b32 s23, 0x20000
    s_lshl_b32 s30, s25, {csh}
    s_add_u32 s38, s14, s30
    s_addc_u32 s39, s15, 0
    """)
    def tile_off():
        if gx: a("s_xor_b32 s32, s32, s55")
        if len(runs)==1:
            a(f"s_lshl_b32 s32, s32, {runs[0][2]}")
        else:
            for i,(b,ln,ab) in enumerate(runs):
                d = "s52" if i==0 else "s53"
                a(f"s_bfe_u32 {d}, s32, 0x{(ln<<16)|b:x}")
                a(f"s_lshl_b32 {d}, {d}, {ab}")
                if i: a("s_add_u32 s52, s52, s53")
            a("s_mov_b32 s32, s52")
    def issue(win):
        if not nodma:
            for (srd,lo) in [(16,0),(20,8192)]:
                for h in range(2):
                    a(f"s_add_u32 s33, s31, {lo+h*4096}")
                    a(f"s_mov_b32 m0, s33")
                    lin = all(noff(4*h+n)==noff(4*h)+n*1024 for n in range(4))
                    if lin: a(f"s_add_u32 s35, s32, {noff(4*h)}")
                    for n in range(4):
                        assert noff(4*h+n)-n*1024>=0
                        if not lin: a(f"s_add_u32 s35, s32, {noff(4*h+n)-n*1024}")
                        if win and W: a(f"s_waitcnt vmcnt({W-1})")
                        a(f"buffer_load_dwordx4 v{1+(n&1)}, s[{srd}:{srd+3}], s35 offen offset:{n*1024} {pol if srd==16 else polv} lds")
        a(f"s_add_u32 s31, s31, {SLOT}")
        a(f"s_and_b32 s31, s31, {R*SLOT-1}")
    for i in range(R-1):
        if xr:
            a(f"s_xor_b32 s32, s51, {i}")
            a(f"s_add_u32 s32, s32, s46")
        else: a(f"s_add_u32 s32, s46, {i}")
        tile_off()
        issue(i*16+16>W if W else False)
    a(f"s_mov_b32 s36, 0")
    a.label("L_lloop")
    a(f"""
    s_waitcnt vmcnt({(R-2)*16}) lgkmcnt(0)
    s_cmp_eq_u32 s36, s49
    s_cbranch_scc1 L_lend
    """)
    if lprof:
        a(f"""
        s_cmp_eq_u32 s36, {lprof-1}
        s_cbranch_scc0 L_lp
        s_memrealtime s[74:75]
        s_waitcnt lgkmcnt(0)
        """)
        a.label("L_lp")
    a(f"""
    s_barrier
    s_add_u32 s47, s36, {R-1}      ; n
    {'s_xor_b32 s32, s51, s47' if xr else 's_mov_b32 s32, s47'}
    s_add_u32 s32, s46, s32
    s_cmp_lt_u32 s47, {NS}
    s_cbranch_scc1 L_static
    """)
    if dyn:
        a(f"""
        s_and_b32 s48, s47, 3
        v_readlane_b32 s32, v20, s48
        s_nop 3
        s_add_u32 s32, s32, {4*NS}
        """)
    else:
        a(f"s_mov_b32 s32, {NTOT}")
    a(f"""
    s_cmp_lt_u32 s32, {NTOT}
    s_cselect_b32 s18, 0x200000, 0
    s_cselect_b32 s22, 0x200000, 0
    s_cselect_b32 s48, s49, s47
    s_min_u32 s49, s49, s48
    v_mov_b32 v21, s49
    ds_write_b32 v22, v21
    """)
    a.label("L_static")
    tile_off()
    issue(True)
    a(f"""
    s_cmp_eq_u32 s36, {HSI}
    s_cbranch_scc0 L_nohs1
    global_load_dwordx2 v[26:27], v23, s[12:13] {xp}
    """)
    a.label("L_nohs1")
    a(f"""
    s_cmp_eq_u32 s36, {HSI+R-1}
    s_cbranch_scc0 L_nohs2
    s_mov_b32 s50, {spin}
    """)
    a.label("L_lhs")
    a(f"""
    v_readfirstlane_b32 s48, v26
    s_sub_u32 s50, s50, 1
    s_cmp_eq_u32 s50, 0
    s_cbranch_scc1 L_hsok
    s_cmp_lg_u32 s48, 0
    s_cbranch_scc1 L_hsok
    global_load_dwordx2 v[26:27], v23, s[12:13] {xp}
    s_waitcnt vmcnt(0)
    s_branch L_lhs
    """)
    a.label("L_hsok")
    a("ds_write_b64 v22, v[26:27] offset:8")
    a.label("L_nohs2")
    if dyn:
        assert HSI+R-1 < NS-2*(R-1)
        a(f"""
        s_cmp_lt_u32 s36, {NS-2*(R-1)}
        s_cbranch_scc1 L_noclaim
        s_add_u32 s48, s36, {2*(R-1)}
        s_and_b32 s48, s48, 3
        s_lshl_b64 exec, 1, s48
        global_atomic_add v20, v23, v24, s[38:39] sc0
        s_mov_b64 exec, -1
        """)
        a.label("L_noclaim")
    a(f"""
    s_add_u32 s36, s36, 1
    s_branch L_lloop
    """)
    a.label("L_lend")
    a("s_waitcnt vmcnt(0)")
    if lprof:
        a(f"""
        s_lshl_b32 s3, s2, 6
        s_add_u32 s14, s14, s3
        s_addc_u32 s15, s15, 0
        s_add_u32 s14, s14, {TS_OFF}
        s_addc_u32 s15, s15, 0
        v_mov_b32 v32, s72
        v_mov_b32 v33, s73
        v_mov_b32 v34, s74
        v_mov_b32 v35, s75
        v_mov_b32 v8, 0
        global_store_dwordx4 v8, v[32:35], s[14:15] offset:48
        s_waitcnt vmcnt(0)
        """)
    a("s_endpgm")

    a.label("L_comp")
    a(f"""
    v_and_b32 v4, 15, v3
    v_lshrrev_b32 v5, 4, v3       ; g
    s_lshl_b32 s27, s25, 2
    s_add_u32 s27, s27, s24       ; 4p+w
    s_lshl_b32 s28, s27, 12
    v_lshlrev_b32 v6, 8, v4
    v_lshl_add_u32 v7, v5, 4, v6    ; q*256+g*16
    s_waitcnt lgkmcnt(0)
    s_add_u32 s4, s4, s28
    s_addc_u32 s5, s5, 0
    """)
    for s in range(4):
        a(f"global_load_dwordx4 v[{Q0+4*s}:{Q0+4*s+3}], v7, s[4:5] offset:{64*s}")
    a(f"""
    s_or_b32 s30, s2, s24
    s_cmp_lg_u32 s30, 0
    s_cbranch_scc1 L_noclear
    s_memrealtime s[50:51]
    v_mov_b32 v8, 0
    v_mov_b32 v9, 0
    v_mov_b32 v10, 0
    v_mov_b32 v11, 0
    v_lshlrev_b32 v12, {csh}, v3
    global_store_dwordx4 v12, v[8:11], s[14:15] {xp}
    s_waitcnt vmcnt(0) lgkmcnt(0)
    s_or_b32 s50, s50, 1
    v_mov_b32 v14, s50
    v_mov_b32 v15, s51
    s_mov_b64 exec, 1
    global_store_dwordx2 v8, v[14:15], s[12:13] {xp}
    s_mov_b64 exec, -1
    """)
    a.label("L_noclear")
    a(f"""
    s_lshl_b32 s28, s27, 15        ; (4p+w)*32KiB
    s_add_u32 s40, s14, s28
    s_addc_u32 s41, s15, 0
    s_add_u32 s40, s40, {XB_OFF}
    s_addc_u32 s41, s41, 0
    s_lshl_b32 s28, s27, 12
    s_add_u32 s10, s10, s28
    s_addc_u32 s11, s11, 0
    v_lshlrev_b32 v7, 4, v3        ; lane*16
    v_lshlrev_b32 v6, 8, v4        ; q*256
    v_lshl_add_u32 v6, v5, 3, v6   ; + g*8
    s_lshl_b32 s28, s26, 6         ; 2j*32
    v_add_u32 v{OADR}, s28, v6
    s_lshl_b32 s28, s26, 8
    s_add_u32 s28, s28, {XB_ML}
    v_lshl_add_u32 v{MLO}, v4, 4, s28
    s_lshl_b32 s28, s26, 7
    s_add_u32 s28, s28, {XB_FL}
    v_mov_b32 v{FLO}, s28
    v_and_b32 v8, 3, v3
    v_lshlrev_b32 v8, 7, v8
    v_add_u32 v{FLP}, {XB_FL}, v8
    """)
    for u in range(1,4):
        a(f"""
        s_add_u32 s28, s26, {u}
        s_and_b32 s28, s28, 3
        s_lshl_b32 s29, s28, 2
        s_add_u32 s29, s29, s26
        s_lshl_b32 s29, s29, 10
        v_add_u32 v{XAO+u-1}, s29, v7
        s_lshl_b32 s29, s26, 2
        s_add_u32 s29, s29, s28
        s_lshl_b32 s29, s29, 10
        v_add_u32 v{XAI+u-1}, s29, v7
        s_lshl_b32 s29, s28, 8
        s_add_u32 s29, s29, {XB_ML}
        v_lshl_add_u32 v{MLI+u-1}, v4, 4, s29
        """)
    a(f"""
    v_and_b32 v7, 7, v4
    v_lshlrev_b32 v7, 1, v7
    v_xor_b32 v7, v7, v5
    v_lshlrev_b32 v7, 4, v7
    v_lshl_add_u32 v{KA}, v4, 8, v7
    """)
    for s in range(1,4):
        a(f"v_xor_b32 v{KA+s}, {s<<6}, v{KA}")
    a(f"""
    v_lshrrev_b32 v7, 2, v4        ; r
    v_lshl_add_u32 v7, v5, 2, v7   ; key=4g+r
    v_and_b32 v14, 7, v7           ; k7
    v_and_b32 v15, 3, v3           ; c
    v_lshlrev_b32 v15, 3, v15      ; c*8
    v_lshl_add_u32 v15, v7, 8, v15 ; key*256 + c*8
    v_lshl_add_u32 v15, v14, 5, v15 ; + k7<<5      (db=0)
    s_lshl_b32 s30, s26, 1
    """)
    for t in range(8):
        a(f"s_add_u32 s34, s30, {t}")
        a(f"s_and_b32 s34, s34, 7")
        a(f"s_lshl_b32 s34, s34, 5")
        a(f"v_xor_b32 v{VB+t}, s34, v15")
    for i in range(32): a(f"v_mov_b32 v{O0+i}, 0")
    for i in range(4): a(f"v_mov_b32 v{L0+i}, 0")
    for i in range(4): a(f"v_mov_b32 v{ONE+i}, 0x3f803f80")
    for i in range(32): a(f"v_mov_b32 v{VA+32+i}, 0")
    for i in range(8): a(f"v_mov_b32 v{SS+8+i}, 0xff800000")
    a(f"""
    v_mov_b32 v{VM}, 0xff61b1e6
    v_mov_b32 v{VMC}, 0xff61b1e6
    v_mov_b32 v{VTH}, 0xff61b1e6
    v_mov_b32 v{VMAILA}, {MAIL}
    s_mov_b32 s37, 0x{C_SCALE:x}
    s_mov_b32 s44, 0x{fbits(THR/CF):x}
    s_mov_b32 s36, 0
    s_lshl_b32 s45, 1, s26
    s_waitcnt vmcnt(0)
    """)
    if cyc: stamp(6); a("s_waitcnt lgkmcnt(0)")

    def check(sb, lbl):
        S=SS+8*sb
        a(f"""
        v_max3_f32 v{T0}, v{S}, v{S+1}, v{S+2}
        v_max3_f32 v{T1}, v{S+3}, v{S+4}, v{S+5}
        v_max3_f32 v{T0}, v{T0}, v{S+6}, v{S+7}
        v_max_f32 v{T0}, v{T0}, v{T1}
        v_cmp_gt_f32 vcc, v{T0}, v{VTH}
        s_cbranch_vccnz L_rare{lbl}
        """)
        a.label(f"L_ret{lbl}")
    def softmax_B(sb):
        S=SS+8*sb
        for i in range(8): a(f"v_fma_f32 v{S+i}, v{S+i}, s37, -v{VMC}")
        for i in range(8): a(f"v_exp_f32 v{S+i}, v{S+i}")
        for i in range(4): a(f"v_cvt_pk_bf16_f32 v{P0+i}, v{S+2*i}, v{S+2*i+1}")
    def pv(vb, t):
        V=VA+32*vb
        a(f"v_mfma_f32_16x16x32_bf16 v[{O0+4*t}:{O0+4*t+3}], v[{V+4*t}:{V+4*t+3}], v[{P0}:{P0+3}], v[{O0+4*t}:{O0+4*t+3}]")
    def lsum():
        a(f"v_mfma_f32_16x16x32_bf16 v[{L0}:{L0+3}], v[{ONE}:{ONE+3}], v[{P0}:{P0+3}], v[{L0}:{L0+3}]")
    def rare(lbl):
        a.label(f"L_rare{lbl}")
        a(f"""
        v_max_f32 v{T0}, v{T0}, v{VM}
        v_mov_b32 v{T1}, v{T0}
        s_nop 1
        v_permlane16_swap_b32 v{T0}, v{T1}
        v_max_f32 v{T0}, v{T0}, v{T1}
        v_mov_b32 v{T1}, v{T0}
        s_nop 1
        v_permlane32_swap_b32 v{T0}, v{T1}
        v_max_f32 v{VM}, v{T0}, v{T1}
        v_mul_f32 v{T2}, s37, v{VM}
        v_add_f32 v{VTH}, s44, v{VM}
        v_sub_f32 v{T3}, v{VMC}, v{T2}
        v_exp_f32 v{T3}, v{T3}
        v_mov_b32 v{VMC}, v{T2}
        s_nop 0
        """)
        for i in range(4): a(f"v_mul_f32 v{L0+i}, v{T3}, v{L0+i}")
        for i in range(32): a(f"v_mul_f32 v{O0+i}, v{T3}, v{O0+i}")
        a(f"s_branch L_ret{lbl}")

    a.label("L_cloop")
    for r in range(R):
        cur=r&1; prev=cur^1
        base=r*SLOT
        S=SS+8*cur
        V=VA+32*cur
        a("s_barrier")
        if prof and r==0:
            for (it,sl) in ((4,3),(24,6),(44,7)):
                a(f"s_cmp_eq_u32 s36, {it}")
                a(f"s_cbranch_scc0 L_pr{sl}")
                a(f"s_memrealtime s[{60+2*sl}:{61+2*sl}]")
                a("s_waitcnt lgkmcnt(0)")
                a.label(f"L_pr{sl}")
        if r==0 and touch and not noepi:
            a(f"s_cmp_eq_u32 s36, {touch}")
            a("s_cbranch_scc1 L_touch")
            a.label("L_touchret")
        a(f"ds_read_b32 v{VMAIL}, v{VMAILA}")
        if not nocomp:
            for kb in range(2):
                for s in range(4):
                    a(f"ds_read_b128 v[{K0+16*kb+4*s}:{K0+16*kb+4*s+3}], v{KA+s} offset:{base+kb*4096}")
            check(prev, r)
            softmax_B(prev)
            def vread(t,hb):
                a(f"ds_read_b64_tr_b16 v[{V+4*t+2*hb}:{V+4*t+2*hb+1}], v{VB+t} offset:{base+8192+hb*4096}")
            def qk(kb,s):
                c = "0" if s==0 else f"v[{S+4*kb}:{S+4*kb+3}]"
                a(f"v_mfma_f32_16x16x32_bf16 v[{S+4*kb}:{S+4*kb+3}], v[{K0+16*kb+4*s}:{K0+16*kb+4*s+3}], v[{Q0+4*s}:{Q0+4*s+3}], {c}")
            vread(0,0); vread(0,1)
            lsum()
            vread(1,0); vread(1,1)
            pv(prev,0)
            vread(2,0); vread(2,1)
            pv(prev,1)
            a("s_waitcnt lgkmcnt(6)")
            for t in range(2,6):
                pv(prev,t); vread(t+1,0); vread(t+1,1)
            pv(prev,6)
            vread(7,0)
            pv(prev,7)
            a("s_waitcnt lgkmcnt(14)")
            vread(7,1)
            for s in range(4): qk(0,s); qk(1,s)
        a(f"s_add_u32 s36, s36, 1")
        a(f"s_waitcnt lgkmcnt(0)")
        a(f"v_cmp_eq_u32 vcc, s36, v{VMAIL}")
        a(f"s_cbranch_vccnz L_drain{cur}")
    a("s_branch L_cloop")
    if touch and not noepi:
        assert touch%R==0
        a.label("L_touch")
        a(f"""
        s_mov_b64 exec, 1
        global_load_dword v{DUM}, v{FLO}, s[40:41]
        global_load_dword v{DUM}, v{OADR}, s[10:11]
        s_mov_b64 exec, -1
        s_branch L_touchret
        """)
    for par in range(2):
        a.label(f"L_drain{par}")
        a(f"ds_read_b64 v[{VMAIL}:{VMAIL+1}], v{VMAILA} offset:8")
        if not nocomp:
            a("s_nop 7")
            check(par, f"d{par}")
            softmax_B(par)
            a("s_nop 1")
            lsum()
            for t in (2,3,4,5,6,7,0,1): pv(par,t)
        a("s_branch L_epi")
    if not nocomp:
        for r in range(R): rare(r)
        rare("d0"); rare("d1")
    a.label("L_epi")
    stamp(1)
    if cyc: stamp(7)
    if not noepi:
        o=O0+8
        a("s_nop 4")
        a(f"v_max3_f32 v{T0}, |v{o}|, |v{o+1}|, |v{o+2}|")
        a(f"v_max3_f32 v{T1}, |v{o+3}|, |v{o+4}|, |v{o+5}|")
        k=6; t=0
        while k<24:
            tr=(T0,T1)[t&1]
            a(f"v_max3_f32 v{tr}, v{tr}, |v{o+k}|, |v{o+k+1}|")
            k+=2; t+=1
        a(f"""
        v_max_f32 v{T0}, v{T0}, v{T1}
        v_mov_b32 v{GM}, v{VMC}
        v_mov_b32 v{T1}, v{T0}
        v_mov_b32 v{GM+1}, v{L0}
        s_nop 0
        v_permlane16_swap_b32 v{T0}, v{T1}
        v_max_f32 v{T0}, v{T0}, v{T1}
        v_mov_b32 v{T1}, v{T0}
        v_mov_b32 v{GM+3}, 0
        s_nop 0
        v_permlane32_swap_b32 v{T0}, v{T1}
        v_max_f32 v{T0}, v{T0}, v{T1}
        v_frexp_exp_i32_f32 v{T1}, v{T0}
        v_sub_u32 v{T1}, 15, v{T1}
        v_min_i32 v{GM+2}, 0x7e, v{T1}
        v_ldexp_f32 v12, 1.0, v{GM+2}
        """)
        for u in range(1,4):
            ob=O0+8*u; g=G0+4*(u-1)
            for i in range(4):
                a(f"v_pk_mul_f32 v[{ob+2*i}:{ob+2*i+1}], v[{ob+2*i}:{ob+2*i+1}], v[12:13] op_sel_hi:[1,0]")
            for i in range(4):
                a(f"v_cvt_pk_f16_f32 v{g+i}, v{ob+2*i}, v{ob+2*i+1}")
            a(f"global_store_dwordx4 v{XAO+u-1}, v[{g}:{g+3}], s[40:41] {xp}")
        a(f"""
        s_mov_b64 exec, 0xffff
        global_store_dwordx4 v{MLO}, v[{GM}:{GM+3}], s[40:41] {xp}
        s_mov_b64 exec, 1
        s_waitcnt vmcnt(0) lgkmcnt(0)
        global_store_dwordx2 v{FLO}, v[{VMAIL}:{VMAIL+1}], s[40:41] {xp}
        """)
        stamp(2)
        a(f"""
        s_andn2_b32 s46, 15, s45
        s_mov_b32 s47, 0
        s_mov_b64 exec, s[46:47]
        s_mov_b32 s36, {spin}
        """)
        if npoll==1:
            a("s_branch L_poll0")
            a.label("L_poll")
            if psleep: a(f"s_sleep {psleep}")
            a.label("L_poll0")
            a(f"""
            global_load_dwordx2 v[12:13], v{FLP}, s[40:41] {xp}
            s_sub_u32 s36, s36, 1
            s_cmp_eq_u32 s36, 0
            s_cbranch_scc1 L_poll_ok
            s_waitcnt vmcnt(0)
            v_cmp_eq_u64 vcc, v[12:13], v[{VMAIL}:{VMAIL+1}]
            s_cmp_eq_u32 vcc_lo, s46
            s_cbranch_scc0 L_poll
            """)
        else:
            regs=[12,14,32,34][:npoll]
            for i,rg in enumerate(regs):
                a(f"global_load_dwordx2 v[{rg}:{rg+1}], v{FLP}, s[40:41] {xp}")
                if i<npoll-1: a(f"s_sleep {psleep}")
            a.label("L_poll")
            for i,rg in enumerate(regs):
                a(f"""
                s_waitcnt vmcnt({npoll-1})
                v_cmp_eq_u64 vcc, v[{rg}:{rg+1}], v[{VMAIL}:{VMAIL+1}]
                s_cmp_eq_u32 vcc_lo, s46
                s_cbranch_scc1 L_poll_ok
                global_load_dwordx2 v[{rg}:{rg+1}], v{FLP}, s[40:41] {xp}
                """)
            a(f"""
            s_sub_u32 s36, s36, 1
            s_cmp_eq_u32 s36, 0
            s_cbranch_scc0 L_poll
            """)
        a.label("L_poll_ok")
        a("s_mov_b64 exec, -1")
        stamp(3)
        if npoll>1: a("s_waitcnt vmcnt(0)")
        for u in range(1,4):
            a(f"global_load_dwordx4 v[{XML+4*(u-1)}:{XML+4*(u-1)+3}], v{MLI+u-1}, s[40:41] {xp}")
        for u in range(1,4):
            a(f"global_load_dwordx4 v[{X0+4*(u-1)}:{X0+4*(u-1)+3}], v{XAI+u-1}, s[40:41] {xp}")
        a("s_waitcnt vmcnt(3)")
        m=[VMC, XML, XML+4, XML+8]
        l=[L0, XML+1, XML+5, XML+9]
        kk=[None, XML+2, XML+6, XML+10]
        a(f"""
        v_max3_f32 v{T0}, v{m[0]}, v{m[1]}, v{m[2]}
        v_max_f32 v{T0}, v{T0}, v{m[3]}
        v_sub_f32 v12, v{m[0]}, v{T0}
        v_sub_f32 v13, v{m[1]}, v{T0}
        v_sub_f32 v14, v{m[2]}, v{T0}
        v_sub_f32 v15, v{m[3]}, v{T0}
        v_exp_f32 v12, v12
        v_exp_f32 v13, v13
        v_exp_f32 v14, v14
        v_exp_f32 v15, v15
        v_sub_u32 v{kk[1]}, 0, v{kk[1]}
        v_sub_u32 v{kk[2]}, 0, v{kk[2]}
        v_sub_u32 v{kk[3]}, 0, v{kk[3]}
        v_mul_f32 v{T1}, v{l[0]}, v12
        v_fmac_f32 v{T1}, v{l[1]}, v13
        v_fmac_f32 v{T1}, v{l[2]}, v14
        v_fmac_f32 v{T1}, v{l[3]}, v15
        v_rcp_f32 v{T3}, v{T1}
        v_ldexp_f32 v13, v13, v{kk[1]}
        v_ldexp_f32 v14, v14, v{kk[2]}
        v_ldexp_f32 v15, v15, v{kk[3]}
        """)
        for i in range(8):
            a(f"v_mul_f32 v{O0+i}, v{O0+i}, v12")
        a("s_waitcnt vmcnt(0)")
        stamp(4)
        for u in range(1,4):
            for i in range(8):
                a(f"v_fma_mix_f32 v{O0+i}, v{X0+4*(u-1)+i//2}, v{12+u}, v{O0+i} op_sel:[{i&1},0,0] op_sel_hi:[1,0,0]")
        a(f"""
        v_fma_f32 v{T2}, -v{T1}, v{T3}, 1.0
        v_fmac_f32 v{T3}, v{T3}, v{T2}
        """)
        for i in range(8):
            a(f"v_mul_f32 v{O0+i}, v{O0+i}, v{T3}")
        a(f"""
        v_cvt_pk_bf16_f32 v12, v{O0}, v{O0+1}
        v_cvt_pk_bf16_f32 v13, v{O0+2}, v{O0+3}
        v_cvt_pk_bf16_f32 v14, v{O0+4}, v{O0+5}
        v_cvt_pk_bf16_f32 v15, v{O0+6}, v{O0+7}
        global_store_dwordx2 v{OADR}, v[12:13], s[10:11] {opol}
        global_store_dwordx2 v{OADR}, v[14:15], s[10:11] offset:32 {opol}
        """)
    if ts:
        a("s_waitcnt vmcnt(0)")
        a("v_mov_b32 v8, 0")
        stamp(5)
        a(f"""
        s_waitcnt lgkmcnt(0)
        s_cmp_lg_u32 s24, 0
        s_cbranch_scc1 L_done
        s_lshl_b32 s3, s2, 6
        s_add_u32 s14, s14, s3
        s_addc_u32 s15, s15, 0
        s_add_u32 s14, s14, {TS_OFF}
        s_addc_u32 s15, s15, 0
        """)
        if cyc:
            a("s_sub_u32 s72, s74, s72")
            a("s_mov_b32 s73, 0")
        elif not prof:
            a("s_mov_b32 s72, s36")
            a("s_mov_b32 s73, 0")
        if not prof:
            a("s_mov_b32 s74, 0")
            a("s_mov_b32 s75, 0")
        for i in range(0,6 if lprof else 8,2):
            a(f"""
            v_mov_b32 v{32+2*i}, s{60+2*i}
            v_mov_b32 v{33+2*i}, s{61+2*i}
            v_mov_b32 v{34+2*i}, s{62+2*i}
            v_mov_b32 v{35+2*i}, s{63+2*i}
            global_store_dwordx4 v8, v[{32+2*i}:{35+2*i}], s[14:15] offset:{8*i}
            """)
    a.label("L_done")
    a("s_endpgm")
    txt=HDR+f"; @launch grid=(256,1,1) block=(320,1,1) lds={lds}\n"+'.amdgcn_target "amdgcn-amd-amdhsa--gfx950"\n.text\n'+kernel_head(NAME)+a.text()+'.section .rodata,"a"\n.p2align 6\n'+kernel_desc(NAME,nv or NVGPR)
    return txt

if __name__=='__main__':
    import ast
    out=sys.argv[1]
    kw={}
    for x in sys.argv[2:]:
        k,v=x.split('=')
        try: v=ast.literal_eval(v)
        except Exception: pass
        kw[k]=v
    open(out,'w').write(gen(**kw))
```

```python
import sys, struct
from asmlib import *

NAME='standalone__gqa_softmax__sampling_kernel'
def fbits(x): return struct.unpack('<I',struct.pack('<f',x))[0]
CF = 0.08838834764831845*1.4426950408889634
C_SCALE = fbits(CF)

Q0=16
K0=32
VA=64
SS=128
P0=144
O0=148
L0=180
ONE=184
KA=188
VB=192
VM=200; VMC=201; VTH=202
T0=203; T1=204; T2=205; T3=206
VMAILA=207; VMAIL=208
XAO=210
XAI=213
OADR=216
MLO=217
MLI=218
FLO=221
FLP=222
DUM=223
NVGPR=224
X0=32
G0=44
GM=56
XML=64

XB_OFF=1<<20
XB_ML=16384
XB_FL=16384+1024
XB_CK=16384+2048
CKC=[0x9e3579b1,0x85eb4a6b,0xc2b3ae35,0x27d52f2f,0x165767b1,0xd3a3646d,0xfd71c5a7]
TS_OFF=480<<20
R=4
SLOT=16384
MAIL=R*SLOT

def gen(W=24, pol='nt', polv=None, mapping=1, ts=False, spin=1<<16, cyc=False, THR=8.0, lprio=0,
        nodma=False, nocomp=False, NS=48, dyn=True, psleep=1, HSI=None, noepi=False, opol='', csh=10,
        touch=8, chk=False, pwait=None, pollop='load', flop='store', tmode=0, tpol='sc1', xp='sc1', xst='sc1', prof=False, lprof=0, nv=None, npoll=1, xr=None, gx=None, pat='r0 r1 t0 t1 n0 n1 n2 t2 t3 t4 t5 t6 t7'):
    if polv is None: polv=pol
    toks=pat.split(); assert sorted(toks)==sorted(['r0','r1','n0','n1','n2']+[f't{i}' for i in range(8)])
    pos={x:8+i for i,x in enumerate(toks)}
    def noff(n): return sum(((n>>b)&1)<<pos[f'n{b}'] for b in range(3))
    runs=[]
    for b in range(8):
        if runs and runs[-1][0]+runs[-1][1]==b and runs[-1][2]+runs[-1][1]==pos[f't{b}']:
            runs[-1]=(runs[-1][0],runs[-1][1]+1,runs[-1][2])
        else: runs.append((b,1,pos[f't{b}']))
    a=A()
    lds=MAIL+16384+128
    NTOT=256
    if not dyn: NS=64
    if HSI is None: HSI=NS-12
    if xr: assert NS%(xr[1]+1)==0
    def stamp(i):
        if ts:
            a(f"{'s_memtime' if (cyc and i in (6,7)) else 's_memrealtime'} s[{60+2*i}:{61+2*i}]")
    a(f"""
    s_cmp_ge_u32 s2, 256
    s_cbranch_scc1 L_done
    s_load_dwordx4 s[4:7], s[0:1], 0
    s_load_dwordx4 s[8:11], s[0:1], 16
    s_load_dwordx4 s[12:15], s[0:1], 32
    """)
    stamp(0)
    a("""
    v_lshrrev_b32 v2, 6, v0
    v_and_b32 v3, 63, v0
    v_readfirstlane_b32 s24, v2
    """)
    if mapping==0:
        a("""
        s_lshr_b32 s25, s2, 5
        s_lshl_b32 s25, s25, 3
        s_and_b32 s26, s2, 7
        s_or_b32 s25, s25, s26
        s_lshr_b32 s26, s2, 3
        s_and_b32 s26, s26, 3
        """)
    elif mapping==1:
        a("""
        s_lshr_b32 s25, s2, 2
        s_and_b32 s26, s2, 3
        """)
    elif mapping==2:
        a("""
        s_and_b32 s26, s2, 7
        s_lshr_b32 s27, s26, 1
        s_xor_b32 s26, s26, s27
        s_and_b32 s26, s26, 1
        s_lshr_b32 s25, s2, 3
        s_lshl_b32 s25, s25, 1
        s_or_b32 s25, s25, s26
        s_mov_b32 s26, s27
        """)
    elif mapping==3:
        a("""
        s_and_b32 s26, s2, 1
        s_lshr_b32 s25, s2, 3
        s_lshl_b32 s25, s25, 1
        s_or_b32 s25, s25, s26
        s_lshr_b32 s26, s2, 1
        s_and_b32 s26, s26, 3
        """)
    a(f"""
    s_cmp_lt_u32 s24, 4
    s_cbranch_scc1 L_comp
    """)
    if lprio: a(f"s_setprio {lprio}")
    a(f"""
    s_lshl_b32 s29, s25, 21
    v_lshrrev_b32 v4, 4, v3      ; rr
    v_and_b32 v5, 15, v3         ; c'
    v_lshlrev_b32 v6, 1, v4      ; f = rr<<1
    v_xor_b32 v5, v5, v6
    v_lshlrev_b32 v5, 4, v5
    v_and_b32 v6, 1, v4
    v_lshl_add_u32 v5, v6, {pos['r0']}, v5
    v_lshrrev_b32 v6, 1, v4
    v_lshl_add_u32 v1, v6, {pos['r1']}, v5
    v_xor_b32 v2, 0x80, v1
    s_mov_b32 s31, 0
    s_mul_i32 s46, s26, {NS}
    {f's_bfe_u32 s51, s2, 0x{((xr[1].bit_length())<<16)|xr[0]:x}' if xr else ''}
    s_mov_b32 s49, 0x7fffffff    ; E
    s_mov_b32 s55, 0
    v_mov_b32 v21, s49
    v_mov_b32 v22, {MAIL}
    v_mov_b32 v23, 0
    v_mov_b32 v24, 1
    v_mov_b32 v20, 0
    ds_write_b32 v22, v21
    """)
    for (sh,mk,ls) in (gx or []):
        a(f"""
        s_lshr_b32 s52, s25, {sh}
        s_and_b32 s52, s52, {mk}
        s_lshl_b32 s52, s52, {ls}
        s_xor_b32 s55, s55, s52
        """)
    a(f"""
    s_waitcnt lgkmcnt(0)
    {'s_memrealtime s[72:73]' if lprof else ''}
    s_add_u32 s16, s6, s29
    s_addc_u32 s17, s7, 0
    s_mov_b32 s18, 0x200000
    s_mov_b32 s19, 0x20000
    s_add_u32 s20, s8, s29
    s_addc_u32 s21, s9, 0
    s_mov_b32 s22, 0x200000
    s_mov_b32 s23, 0x20000
    s_lshl_b32 s30, s25, {csh}
    s_add_u32 s38, s14, s30
    s_addc_u32 s39, s15, 0
    """)
    def tile_off():
        if gx: a("s_xor_b32 s32, s32, s55")
        if len(runs)==1:
            a(f"s_lshl_b32 s32, s32, {runs[0][2]}")
        else:
            for i,(b,ln,ab) in enumerate(runs):
                d = "s52" if i==0 else "s53"
                a(f"s_bfe_u32 {d}, s32, 0x{(ln<<16)|b:x}")
                a(f"s_lshl_b32 {d}, {d}, {ab}")
                if i: a("s_add_u32 s52, s52, s53")
            a("s_mov_b32 s32, s52")
    def issue(win):
        if not nodma:
            for (srd,lo) in [(16,0),(20,8192)]:
                for h in range(2):
                    a(f"s_add_u32 s33, s31, {lo+h*4096}")
                    a(f"s_mov_b32 m0, s33")
                    lin = all(noff(4*h+n)==noff(4*h)+n*1024 for n in range(4))
                    if lin: a(f"s_add_u32 s35, s32, {noff(4*h)}")
                    for n in range(4):
                        assert noff(4*h+n)-n*1024>=0
                        if not lin: a(f"s_add_u32 s35, s32, {noff(4*h+n)-n*1024}")
                        if win and W: a(f"s_waitcnt vmcnt({W-1})")
                        a(f"buffer_load_dwordx4 v{1+(n&1)}, s[{srd}:{srd+3}], s35 offen offset:{n*1024} {pol if srd==16 else polv} lds")
        a(f"s_add_u32 s31, s31, {SLOT}")
        a(f"s_and_b32 s31, s31, {R*SLOT-1}")
    for i in range(R-1):
        if xr:
            a(f"s_xor_b32 s32, s51, {i}")
            a(f"s_add_u32 s32, s32, s46")
        else: a(f"s_add_u32 s32, s46, {i}")
        tile_off()
        issue(i*16+16>W if W else False)
    a(f"s_mov_b32 s36, 0")
    a.label("L_lloop")
    a(f"""
    s_waitcnt vmcnt({(R-2)*16}) lgkmcnt(0)
    s_cmp_eq_u32 s36, s49
    s_cbranch_scc1 L_lend
    """)
    if lprof:
        a(f"""
        s_cmp_eq_u32 s36, {lprof-1}
        s_cbranch_scc0 L_lp
        s_memrealtime s[74:75]
        s_waitcnt lgkmcnt(0)
        """)
        a.label("L_lp")
    a(f"""
    s_barrier
    s_add_u32 s47, s36, {R-1}      ; n
    {'s_xor_b32 s32, s51, s47' if xr else 's_mov_b32 s32, s47'}
    s_add_u32 s32, s46, s32
    s_cmp_lt_u32 s47, {NS}
    s_cbranch_scc1 L_static
    """)
    if dyn:
        a(f"""
        s_and_b32 s48, s47, 3
        v_readlane_b32 s32, v20, s48
        s_nop 3
        s_add_u32 s32, s32, {4*NS}
        """)
    else:
        a(f"s_mov_b32 s32, {NTOT}")
    a(f"""
    s_cmp_lt_u32 s32, {NTOT}
    s_cselect_b32 s18, 0x200000, 0
    s_cselect_b32 s22, 0x200000, 0
    s_cselect_b32 s48, s49, s47
    s_min_u32 s49, s49, s48
    v_mov_b32 v21, s49
    ds_write_b32 v22, v21
    """)
    a.label("L_static")
    tile_off()
    issue(True)
    a(f"""
    s_cmp_eq_u32 s36, {HSI}
    s_cbranch_scc0 L_nohs1
    global_load_dwordx2 v[26:27], v23, s[12:13] {xp}
    """)
    a.label("L_nohs1")
    a(f"""
    s_cmp_eq_u32 s36, {HSI+R-1}
    s_cbranch_scc0 L_nohs2
    s_mov_b32 s50, {spin}
    """)
    a.label("L_lhs")
    a(f"""
    v_readfirstlane_b32 s48, v26
    s_sub_u32 s50, s50, 1
    s_cmp_eq_u32 s50, 0
    s_cbranch_scc1 L_hsok
    s_cmp_lg_u32 s48, 0
    s_cbranch_scc1 L_hsok
    global_load_dwordx2 v[26:27], v23, s[12:13] {xp}
    s_waitcnt vmcnt(0)
    s_branch L_lhs
    """)
    a.label("L_hsok")
    a("ds_write_b64 v22, v[26:27] offset:8")
    a.label("L_nohs2")
    if dyn:
        assert HSI+R-1 < NS-2*(R-1)
        a(f"""
        s_cmp_lt_u32 s36, {NS-2*(R-1)}
        s_cbranch_scc1 L_noclaim
        s_add_u32 s48, s36, {2*(R-1)}
        s_and_b32 s48, s48, 3
        s_lshl_b64 exec, 1, s48
        global_atomic_add v20, v23, v24, s[38:39] sc0
        s_mov_b64 exec, -1
        """)
        a.label("L_noclaim")
    a(f"""
    s_add_u32 s36, s36, 1
    s_branch L_lloop
    """)
    a.label("L_lend")
    a("s_waitcnt vmcnt(0)")
    if lprof:
        a(f"""
        s_lshl_b32 s3, s2, 6
        s_add_u32 s14, s14, s3
        s_addc_u32 s15, s15, 0
        s_add_u32 s14, s14, {TS_OFF}
        s_addc_u32 s15, s15, 0
        v_mov_b32 v32, s72
        v_mov_b32 v33, s73
        v_mov_b32 v34, s74
        v_mov_b32 v35, s75
        v_mov_b32 v8, 0
        global_store_dwordx4 v8, v[32:35], s[14:15] offset:48
        s_waitcnt vmcnt(0)
        """)
    a("s_endpgm")

    a.label("L_comp")
    a(f"""
    v_and_b32 v4, 15, v3
    v_lshrrev_b32 v5, 4, v3       ; g
    s_lshl_b32 s27, s25, 2
    s_add_u32 s27, s27, s24       ; 4p+w
    s_lshl_b32 s28, s27, 12
    v_lshlrev_b32 v6, 8, v4
    v_lshl_add_u32 v7, v5, 4, v6    ; q*256+g*16
    s_waitcnt lgkmcnt(0)
    s_add_u32 s4, s4, s28
    s_addc_u32 s5, s5, 0
    """)
    for s in range(4):
        a(f"global_load_dwordx4 v[{Q0+4*s}:{Q0+4*s+3}], v7, s[4:5] offset:{64*s}")
    a(f"""
    s_or_b32 s30, s2, s24
    s_cmp_lg_u32 s30, 0
    s_cbranch_scc1 L_noclear
    s_memrealtime s[50:51]
    v_mov_b32 v8, 0
    v_mov_b32 v9, 0
    v_mov_b32 v10, 0
    v_mov_b32 v11, 0
    v_lshlrev_b32 v12, {csh}, v3
    global_store_dwordx4 v12, v[8:11], s[14:15] {xp}
    s_waitcnt vmcnt(0) lgkmcnt(0)
    s_or_b32 s50, s50, 1
    v_mov_b32 v14, s50
    v_mov_b32 v15, s51
    s_mov_b64 exec, 1
    global_store_dwordx2 v8, v[14:15], s[12:13] {xp}
    s_mov_b64 exec, -1
    """)
    a.label("L_noclear")
    a(f"""
    s_lshl_b32 s28, s27, 15        ; (4p+w)*32KiB
    s_add_u32 s40, s14, s28
    s_addc_u32 s41, s15, 0
    s_add_u32 s40, s40, {XB_OFF}
    s_addc_u32 s41, s41, 0
    s_lshl_b32 s28, s27, 12
    s_add_u32 s10, s10, s28
    s_addc_u32 s11, s11, 0
    v_lshlrev_b32 v7, 4, v3        ; lane*16
    v_lshlrev_b32 v6, 8, v4        ; q*256
    v_lshl_add_u32 v6, v5, 3, v6   ; + g*8
    s_lshl_b32 s28, s26, 6         ; 2j*32
    v_add_u32 v{OADR}, s28, v6
    s_lshl_b32 s28, s26, 8
    s_add_u32 s28, s28, {XB_ML}
    v_lshl_add_u32 v{MLO}, v4, 4, s28
    s_lshl_b32 s28, s26, 7
    s_add_u32 s28, s28, {XB_FL}
    v_mov_b32 v{FLO}, s28
    v_and_b32 v8, 3, v3
    v_lshlrev_b32 v8, 7, v8
    v_add_u32 v{FLP}, {XB_FL}, v8
    """)
    if chk:
        a(f"""
        v_and_b32 v8, 3, v3
        s_add_u32 s28, s26, 1
        v_add_u32 v8, s28, v8
        v_and_b32 v8, 3, v8
        v_lshrrev_b32 v9, 2, v3
        v_lshlrev_b32 v9, 3, v9        ; quad * 8
        s_lshl_b32 s28, s26, 7
        s_add_u32 s28, s28, {XB_CK}
        v_lshl_add_u32 v10, v8, 9, v9
        v_add_u32 v{FLO}, s28, v10
        s_lshl_b32 s28, s26, 9
        s_add_u32 s28, s28, {XB_CK}
        v_lshl_add_u32 v10, v8, 7, v9
        v_add_u32 v{FLP}, s28, v10
        s_mov_b32 s84, 0x11111111
        s_mov_b32 s85, 0x11111111
        s_mov_b32 s86, 0x22222222
        s_mov_b32 s87, 0x22222222
        s_mov_b32 s88, 0x77777777
        s_mov_b32 s89, 0x77777777
        """)
        for i,c in enumerate(CKC): a(f"s_mov_b32 s{76+i}, 0x{c:x}")
        a("s_mov_b32 s90, 4096          ; bound on the reload loop")
    for u in range(1,4):
        a(f"""
        s_add_u32 s28, s26, {u}
        s_and_b32 s28, s28, 3
        s_lshl_b32 s29, s28, 2
        s_add_u32 s29, s29, s26
        s_lshl_b32 s29, s29, 10
        v_add_u32 v{XAO+u-1}, s29, v7
        s_lshl_b32 s29, s26, 2
        s_add_u32 s29, s29, s28
        s_lshl_b32 s29, s29, 10
        v_add_u32 v{XAI+u-1}, s29, v7
        s_lshl_b32 s29, s28, 8
        s_add_u32 s29, s29, {XB_ML}
        v_lshl_add_u32 v{MLI+u-1}, v4, 4, s29
        """)
    a(f"""
    v_and_b32 v7, 7, v4
    v_lshlrev_b32 v7, 1, v7
    v_xor_b32 v7, v7, v5
    v_lshlrev_b32 v7, 4, v7
    v_lshl_add_u32 v{KA}, v4, 8, v7
    """)
    for s in range(1,4):
        a(f"v_xor_b32 v{KA+s}, {s<<6}, v{KA}")
    a(f"""
    v_lshrrev_b32 v7, 2, v4        ; r
    v_lshl_add_u32 v7, v5, 2, v7   ; key=4g+r
    v_and_b32 v14, 7, v7           ; k7
    v_and_b32 v15, 3, v3           ; c
    v_lshlrev_b32 v15, 3, v15      ; c*8
    v_lshl_add_u32 v15, v7, 8, v15 ; key*256 + c*8
    v_lshl_add_u32 v15, v14, 5, v15 ; + k7<<5      (db=0)
    s_lshl_b32 s30, s26, 1
    """)
    for t in range(8):
        a(f"s_add_u32 s34, s30, {t}")
        a(f"s_and_b32 s34, s34, 7")
        a(f"s_lshl_b32 s34, s34, 5")
        a(f"v_xor_b32 v{VB+t}, s34, v15")
    for i in range(32): a(f"v_mov_b32 v{O0+i}, 0")
    for i in range(4): a(f"v_mov_b32 v{L0+i}, 0")
    for i in range(4): a(f"v_mov_b32 v{ONE+i}, 0x3f803f80")
    for i in range(32): a(f"v_mov_b32 v{VA+32+i}, 0")
    for i in range(8): a(f"v_mov_b32 v{SS+8+i}, 0xff800000")
    a(f"""
    v_mov_b32 v{VM}, 0xff61b1e6
    v_mov_b32 v{VMC}, 0xff61b1e6
    v_mov_b32 v{VTH}, 0xff61b1e6
    v_mov_b32 v{VMAILA}, {MAIL}
    s_mov_b32 s37, 0x{C_SCALE:x}
    s_mov_b32 s44, 0x{fbits(THR/CF):x}
    s_mov_b32 s36, 0
    s_lshl_b32 s45, 1, s26
    s_waitcnt vmcnt(0)
    """)
    if cyc: stamp(6); a("s_waitcnt lgkmcnt(0)")

    def check(sb, lbl):
        S=SS+8*sb
        a(f"""
        v_max3_f32 v{T0}, v{S}, v{S+1}, v{S+2}
        v_max3_f32 v{T1}, v{S+3}, v{S+4}, v{S+5}
        v_max3_f32 v{T0}, v{T0}, v{S+6}, v{S+7}
        v_max_f32 v{T0}, v{T0}, v{T1}
        v_cmp_gt_f32 vcc, v{T0}, v{VTH}
        s_cbranch_vccnz L_rare{lbl}
        """)
        a.label(f"L_ret{lbl}")
    def softmax_B(sb):
        S=SS+8*sb
        for i in range(8): a(f"v_fma_f32 v{S+i}, v{S+i}, s37, -v{VMC}")
        for i in range(8): a(f"v_exp_f32 v{S+i}, v{S+i}")
        for i in range(4): a(f"v_cvt_pk_bf16_f32 v{P0+i}, v{S+2*i}, v{S+2*i+1}")
    def pv(vb, t):
        V=VA+32*vb
        a(f"v_mfma_f32_16x16x32_bf16 v[{O0+4*t}:{O0+4*t+3}], v[{V+4*t}:{V+4*t+3}], v[{P0}:{P0+3}], v[{O0+4*t}:{O0+4*t+3}]")
    def lsum():
        a(f"v_mfma_f32_16x16x32_bf16 v[{L0}:{L0+3}], v[{ONE}:{ONE+3}], v[{P0}:{P0+3}], v[{L0}:{L0+3}]")
    def rare(lbl):
        a.label(f"L_rare{lbl}")
        a(f"""
        v_max_f32 v{T0}, v{T0}, v{VM}
        v_mov_b32 v{T1}, v{T0}
        s_nop 1
        v_permlane16_swap_b32 v{T0}, v{T1}
        v_max_f32 v{T0}, v{T0}, v{T1}
        v_mov_b32 v{T1}, v{T0}
        s_nop 1
        v_permlane32_swap_b32 v{T0}, v{T1}
        v_max_f32 v{VM}, v{T0}, v{T1}
        v_mul_f32 v{T2}, s37, v{VM}
        v_add_f32 v{VTH}, s44, v{VM}
        v_sub_f32 v{T3}, v{VMC}, v{T2}
        v_exp_f32 v{T3}, v{T3}
        v_mov_b32 v{VMC}, v{T2}
        s_nop 0
        """)
        for i in range(4): a(f"v_mul_f32 v{L0+i}, v{T3}, v{L0+i}")
        for i in range(32): a(f"v_mul_f32 v{O0+i}, v{T3}, v{O0+i}")
        a(f"s_branch L_ret{lbl}")

    a.label("L_cloop")
    for r in range(R):
        cur=r&1; prev=cur^1
        base=r*SLOT
        S=SS+8*cur
        V=VA+32*cur
        a("s_barrier")
        if prof and r==0:
            for (it,sl) in ((4,3),(24,6),(44,7)):
                a(f"s_cmp_eq_u32 s36, {it}")
                a(f"s_cbranch_scc0 L_pr{sl}")
                a(f"s_memrealtime s[{60+2*sl}:{61+2*sl}]")
                a("s_waitcnt lgkmcnt(0)")
                a.label(f"L_pr{sl}")
        if r==0 and touch and not noepi:
            a(f"s_cmp_eq_u32 s36, {touch}")
            a("s_cbranch_scc1 L_touch")
            a.label("L_touchret")
        a(f"ds_read_b32 v{VMAIL}, v{VMAILA}")
        if not nocomp:
            for kb in range(2):
                for s in range(4):
                    a(f"ds_read_b128 v[{K0+16*kb+4*s}:{K0+16*kb+4*s+3}], v{KA+s} offset:{base+kb*4096}")
            check(prev, r)
            softmax_B(prev)
            def vread(t,hb):
                a(f"ds_read_b64_tr_b16 v[{V+4*t+2*hb}:{V+4*t+2*hb+1}], v{VB+t} offset:{base+8192+hb*4096}")
            def qk(kb,s):
                c = "0" if s==0 else f"v[{S+4*kb}:{S+4*kb+3}]"
                a(f"v_mfma_f32_16x16x32_bf16 v[{S+4*kb}:{S+4*kb+3}], v[{K0+16*kb+4*s}:{K0+16*kb+4*s+3}], v[{Q0+4*s}:{Q0+4*s+3}], {c}")
            vread(0,0); vread(0,1)
            lsum()
            vread(1,0); vread(1,1)
            pv(prev,0)
            vread(2,0); vread(2,1)
            pv(prev,1)
            a("s_waitcnt lgkmcnt(6)")
            for t in range(2,6):
                pv(prev,t); vread(t+1,0); vread(t+1,1)
            pv(prev,6)
            vread(7,0)
            pv(prev,7)
            a("s_waitcnt lgkmcnt(14)")
            vread(7,1)
            for s in range(4): qk(0,s); qk(1,s)
        a(f"s_add_u32 s36, s36, 1")
        a(f"s_waitcnt lgkmcnt(0)")
        a(f"v_cmp_eq_u32 vcc, s36, v{VMAIL}")
        a(f"s_cbranch_vccnz L_drain{cur}")
    a("s_branch L_cloop")
    if touch and not noepi:
        assert touch%R==0
        a.label("L_touch")
        if tmode==0:
            a(f"""
            s_mov_b64 exec, 1
            global_load_dword v{DUM}, v{FLO}, s[40:41]
            global_load_dword v{DUM}, v{OADR}, s[10:11]
            s_mov_b64 exec, -1
            s_branch L_touchret
            """)
        else:
            a(f"""
            s_mov_b64 exec, 15
            global_load_dword v{DUM}, v{FLP}, s[40:41] {tpol}
            s_mov_b64 exec, -1
            s_branch L_touchret
            """)
    for par in range(2):
        a.label(f"L_drain{par}")
        a(f"ds_read_b64 v[{VMAIL}:{VMAIL+1}], v{VMAILA} offset:8")
        if not nocomp:
            a("s_nop 7")
            check(par, f"d{par}")
            softmax_B(par)
            a("s_nop 1")
            lsum()
            for t in (2,3,4,5,6,7,0,1): pv(par,t)
        a("s_branch L_epi")
    if not nocomp:
        for r in range(R): rare(r)
        rare("d0"); rare("d1")
    a.label("L_epi")
    stamp(1)
    if cyc: stamp(7)
    if not noepi:
        o=O0+8
        pregs=[76,78,80,82]
        def pcmp(rg):
            if chk: return f"v_cmp_eq_u32 vcc, v{rg+1}, v{VMAIL}"
            return f"v_cmp_eq_u64 vcc, v[{rg}:{rg+1}], v[{VMAIL}:{VMAIL+1}]"
        def pollins(rg):
            if pollop=='load': return f"global_load_dwordx2 v[{rg}:{rg+1}], v{FLP}, s[40:41] {xp}"
            return f"global_atomic_add_x2 v[{rg}:{rg+1}], v{FLP}, v[84:85], s[40:41] {pollop}"
        if pollop!='load':
            a("v_mov_b32 v84, 0")
            a("v_mov_b32 v85, 0")
        a("s_nop 4")
        a(f"v_max3_f32 v{T0}, |v{o}|, |v{o+1}|, |v{o+2}|")
        a(f"v_max3_f32 v{T1}, |v{o+3}|, |v{o+4}|, |v{o+5}|")
        k=6; t=0
        while k<24:
            tr=(T0,T1)[t&1]
            a(f"v_max3_f32 v{tr}, v{tr}, |v{o+k}|, |v{o+k+1}|")
            k+=2; t+=1
        a(f"""
        v_max_f32 v{T0}, v{T0}, v{T1}
        v_mov_b32 v{GM}, v{VMC}
        v_mov_b32 v{T1}, v{T0}
        v_mov_b32 v{GM+1}, v{L0}
        s_nop 0
        v_permlane16_swap_b32 v{T0}, v{T1}
        v_max_f32 v{T0}, v{T0}, v{T1}
        v_mov_b32 v{T1}, v{T0}
        v_mov_b32 v{GM+3}, 0
        s_nop 0
        v_permlane32_swap_b32 v{T0}, v{T1}
        v_max_f32 v{T0}, v{T0}, v{T1}
        v_frexp_exp_i32_f32 v{T1}, v{T0}
        v_sub_u32 v{T1}, 15, v{T1}
        v_min_i32 v{GM+2}, 0x7e, v{T1}
        v_ldexp_f32 v12, 1.0, v{GM+2}
        """)
        CS=60; CU=[61,62,63]
        def dpp2():
            for (qp,pre) in (("[1,0,3,2]",True),("[2,3,0,1]",False)):
                a(f"v_add_u32_dpp v{CU[0]}, v{CU[0]}, v{CU[0]} quad_perm:{qp} row_mask:0xf bank_mask:0xf")
                a(f"v_add_u32_dpp v{CU[1]}, v{CU[1]}, v{CU[1]} quad_perm:{qp} row_mask:0xf bank_mask:0xf")
                if pre: a("s_nop 0")
                a(f"v_add_u32_dpp v{CU[2]}, v{CU[2]}, v{CU[2]} quad_perm:{qp} row_mask:0xf bank_mask:0xf")
        if chk:
            a(f"""
            s_mov_b64 exec, 0xffff
            global_store_dwordx4 v{MLO}, v[{GM}:{GM+3}], s[40:41] {xst}
            s_mov_b64 exec, -1
            s_waitcnt lgkmcnt(0)
            v_dot2_u32_u16 v{CS}, v{GM}, s80, v{VMAIL+1}
            v_dot2_u32_u16 v{CS}, v{GM+1}, s81, v{CS}
            v_dot2_u32_u16 v{CS}, v{GM+2}, s82, v{CS}
            """)
        for u in range(1,4):
            ob=O0+8*u; g=G0+4*(u-1)
            for i in range(4):
                a(f"v_pk_mul_f32 v[{ob+2*i}:{ob+2*i+1}], v[{ob+2*i}:{ob+2*i+1}], v[12:13] op_sel_hi:[1,0]")
            for i in range(4):
                a(f"v_cvt_pk_f16_f32 v{g+i}, v{ob+2*i}, v{ob+2*i+1}")
            if chk!=2: a(f"global_store_dwordx4 v{XAO+u-1}, v[{g}:{g+3}], s[40:41] {xst}")
            if chk:
                for i in range(4):
                    a(f"v_dot2_u32_u16 v{CU[u-1]}, v{g+i}, s{76+i}, v{CS if i==0 else CU[u-1]}")
        if chk:
            dpp2()
            a(f"""
            v_cndmask_b32 v14, v{CU[2]}, v{CU[1]}, s[86:87]
            v_mov_b32 v15, v{VMAIL}
            v_cndmask_b32 v14, v14, v{CU[0]}, s[84:85]
            s_mov_b64 exec, s[88:89]
            global_store_dwordx2 v{FLO}, v[14:15], s[40:41] {xst}
            """)
            if chk==2:
                a("s_mov_b64 exec, -1")
                for u in range(1,4):
                    g=G0+4*(u-1)
                    a(f"global_store_dwordx4 v{XAO+u-1}, v[{g}:{g+3}], s[40:41] {xst}")
        else:
          a(f"""
        s_mov_b64 exec, 0xffff
        global_store_dwordx4 v{MLO}, v[{GM}:{GM+3}], s[40:41] {xst}
        s_mov_b64 exec, 1
        s_waitcnt vmcnt(0) lgkmcnt(0)
        {f"global_store_dwordx2 v{FLO}, v[{VMAIL}:{VMAIL+1}], s[40:41] {xst}" if flop=='store' else f"global_atomic_swap_x2 v{FLO}, v[{VMAIL}:{VMAIL+1}], s[40:41] {flop}"}
        """)
        stamp(2)
        a(f"""
        {'s_mov_b32 s46, 7' if chk else 's_andn2_b32 s46, 15, s45'}
        s_mov_b32 s47, 0
        s_mov_b64 exec, s[46:47]
        s_mov_b32 s36, {spin}
        """)
        if npoll==1:
            a("s_branch L_poll0")
            a.label("L_poll")
            if psleep: a(f"s_sleep {psleep}")
            a.label("L_poll0")
            a(f"""
            {pollins(pregs[0])}
            s_sub_u32 s36, s36, 1
            s_cmp_eq_u32 s36, 0
            s_cbranch_scc1 L_poll_ok
            s_waitcnt vmcnt(0)
            {pcmp(pregs[0])}
            s_cmp_eq_u32 vcc_lo, s46
            s_cbranch_scc0 L_poll
            """)
        else:
            regs=pregs[:npoll]
            for i,rg in enumerate(regs):
                a(pollins(rg))
                if i<npoll-1: a(f"s_sleep {psleep}")
            a.label("L_poll")
            for i,rg in enumerate(regs):
                a(f"""
                s_waitcnt vmcnt({npoll-1})
                {pcmp(rg)}
                s_cmp_eq_u32 vcc_lo, s46
                s_cbranch_scc1 L_poll_ok
                {pollins(rg)}
                """)
            a(f"""
            s_sub_u32 s36, s36, 1
            s_cmp_eq_u32 s36, 0
            s_cbranch_scc0 L_poll
            """)
        a.label("L_poll_ok")
        a("s_mov_b64 exec, -1")
        stamp(3)
        if pwait: a("s_waitcnt vmcnt(0)")
        AC=88
        if chk: a.label("L_reload")
        for u in range(1,4):
            a(f"global_load_dwordx4 v[{XML+4*(u-1)}:{XML+4*(u-1)+3}], v{MLI+u-1}, s[40:41] {xp}")
        for u in range(1,4):
            a(f"global_load_dwordx4 v[{X0+4*(u-1)}:{X0+4*(u-1)+3}], v{XAI+u-1}, s[40:41] {xp}")
        nl=3
        if chk:
            a(f"""
            s_mov_b64 exec, s[88:89]
            global_load_dwordx2 v[86:87], v{FLP}, s[40:41] {xp}
            s_mov_b64 exec, -1
            """)
            nl=4
        a(f"s_waitcnt vmcnt({nl})")
        m=[VMC, XML, XML+4, XML+8]
        l=[L0, XML+1, XML+5, XML+9]
        kk=[None, XML+2, XML+6, XML+10]
        if chk:
            for u in range(1,4):
                a(f"v_dot2_u32_u16 v{CU[u-1]}, v{m[u]}, s80, v{VMAIL+1}")
            for u in range(1,4):
                a(f"v_dot2_u32_u16 v{CU[u-1]}, v{l[u]}, s81, v{CU[u-1]}")
            for u in range(1,4):
                a(f"v_dot2_u32_u16 v{CU[u-1]}, v{kk[u]}, s82, v{CU[u-1]}")
        a(f"""
        v_max3_f32 v{T0}, v{m[0]}, v{m[1]}, v{m[2]}
        v_max_f32 v{T0}, v{T0}, v{m[3]}
        v_sub_f32 v12, v{m[0]}, v{T0}
        v_sub_f32 v13, v{m[1]}, v{T0}
        v_sub_f32 v14, v{m[2]}, v{T0}
        v_sub_f32 v15, v{m[3]}, v{T0}
        v_exp_f32 v12, v12
        v_exp_f32 v13, v13
        v_exp_f32 v14, v14
        v_exp_f32 v15, v15
        v_sub_u32 v{kk[1]}, 0, v{kk[1]}
        v_sub_u32 v{kk[2]}, 0, v{kk[2]}
        v_sub_u32 v{kk[3]}, 0, v{kk[3]}
        v_mul_f32 v{T1}, v{l[0]}, v12
        v_fmac_f32 v{T1}, v{l[1]}, v13
        v_fmac_f32 v{T1}, v{l[2]}, v14
        v_fmac_f32 v{T1}, v{l[3]}, v15
        v_rcp_f32 v{T3}, v{T1}
        v_ldexp_f32 v13, v13, v{kk[1]}
        v_ldexp_f32 v14, v14, v{kk[2]}
        v_ldexp_f32 v15, v15, v{kk[3]}
        """)
        for i in range(8):
            a(f"v_mul_f32 v{AC+i}, v{O0+i}, v12")
        a(f"""
        v_fma_f32 v{T2}, -v{T1}, v{T3}, 1.0
        v_fmac_f32 v{T3}, v{T3}, v{T2}
        """)
        a("s_waitcnt vmcnt(0)")
        stamp(4)
        def mix(u):
            for i in range(8):
                a(f"v_fma_mix_f32 v{AC+i}, v{X0+4*(u-1)+i//2}, v{12+u}, v{AC+i} op_sel:[{i&1},0,0] op_sel_hi:[1,0,0]")
        if chk:
            for i in range(4):
                for u in range(1,4):
                    a(f"v_dot2_u32_u16 v{CU[u-1]}, v{X0+4*(u-1)+i}, s{76+i}, v{CU[u-1]}")
            mix(1)
            for u in range(3): a(f"v_add_u32_dpp v{CU[u]}, v{CU[u]}, v{CU[u]} quad_perm:[1,0,3,2] row_mask:0xf bank_mask:0xf")
            mix(2)
            for u in range(3): a(f"v_add_u32_dpp v{CU[u]}, v{CU[u]}, v{CU[u]} quad_perm:[2,3,0,1] row_mask:0xf bank_mask:0xf")
            mix(3)
            a(f"""
            v_cndmask_b32 v{T0}, v{CU[2]}, v{CU[1]}, s[86:87]
            v_cndmask_b32 v{T0}, v{T0}, v{CU[0]}, s[84:85]
            v_cmp_ne_u32 vcc, v{T0}, v86
            s_and_b64 vcc, vcc, s[88:89]
            s_cbranch_scc0 L_verified
            s_sub_u32 s90, s90, 1
            s_cmp_eq_u32 s90, 0
            s_cbranch_scc0 L_reload
            """)
            a.label("L_verified")
        else:
            for u in range(1,4): mix(u)
        for i in range(8):
            a(f"v_mul_f32 v{O0+i}, v{AC+i}, v{T3}")
        a(f"""
        v_cvt_pk_bf16_f32 v12, v{O0}, v{O0+1}
        v_cvt_pk_bf16_f32 v13, v{O0+2}, v{O0+3}
        v_cvt_pk_bf16_f32 v14, v{O0+4}, v{O0+5}
        v_cvt_pk_bf16_f32 v15, v{O0+6}, v{O0+7}
        global_store_dwordx2 v{OADR}, v[12:13], s[10:11] {opol}
        global_store_dwordx2 v{OADR}, v[14:15], s[10:11] offset:32 {opol}
        """)
    if ts:
        a("s_waitcnt vmcnt(0)")
        a("v_mov_b32 v8, 0")
        stamp(5)
        a(f"""
        s_waitcnt lgkmcnt(0)
        s_cmp_lg_u32 s24, 0
        s_cbranch_scc1 L_done
        s_lshl_b32 s3, s2, 6
        s_add_u32 s14, s14, s3
        s_addc_u32 s15, s15, 0
        s_add_u32 s14, s14, {TS_OFF}
        s_addc_u32 s15, s15, 0
        """)
        if cyc:
            a("s_sub_u32 s72, s74, s72")
            a("s_mov_b32 s73, 0")
        elif not prof:
            a("s_mov_b32 s72, s90" if chk else "s_mov_b32 s72, s36")
            a("s_mov_b32 s73, 0")
        if not prof:
            a("s_mov_b32 s74, 0")
            a("s_mov_b32 s75, 0")
        for i in range(0,6 if lprof else 8,2):
            a(f"""
            v_mov_b32 v{32+2*i}, s{60+2*i}
            v_mov_b32 v{33+2*i}, s{61+2*i}
            v_mov_b32 v{34+2*i}, s{62+2*i}
            v_mov_b32 v{35+2*i}, s{63+2*i}
            global_store_dwordx4 v8, v[{32+2*i}:{35+2*i}], s[14:15] offset:{8*i}
            """)
    a.label("L_done")
    a("s_endpgm")
    txt=HDR+f"; @launch grid=(256,1,1) block=(320,1,1) lds={lds}\n"+'.amdgcn_target "amdgcn-amd-amdhsa--gfx950"\n.text\n'+kernel_head(NAME)+a.text()+'.section .rodata,"a"\n.p2align 6\n'+kernel_desc(NAME,nv or NVGPR)
    return txt

if __name__=='__main__':
    import ast
    out=sys.argv[1]
    kw={}
    for x in sys.argv[2:]:
        k,v=x.split('=')
        try: v=ast.literal_eval(v)
        except Exception: pass
        kw[k]=v
    open(out,'w').write(gen(**kw))
```

```python
import sys, struct
from asmlib import *

NAME='standalone__gqa_softmax__sampling_kernel'
def fbits(x): return struct.unpack('<I',struct.pack('<f',x))[0]
CF = 0.08838834764831845*1.4426950408889634
C_SCALE = fbits(CF)

Q0=16
K0=32
VA=64
SS=128
P0=144
O0=148
L0=180
ONE=184
KA=188
VB=192
VM=200; VMC=201; VTH=202
T0=203; T1=204; T2=205; T3=206
VMAILA=207; VMAIL=208
XAO=210
XAI=213
OADR=216
MLO=217
MLI=218
FLO=221
FLP=222
DUM=223
NVGPR=224
X0=32
G0=44
GM=56
XML=64

XB_OFF=1<<20
XB_ML=16384
XB_FL=16384+1024
XB_CK=16384+2048
CKC=[0x9e3579b1,0x85eb4a6b,0xc2b3ae35,0x27d52f2f,0x165767b1,0xd3a3646d,0xfd71c5a7]
TS_OFF=480<<20
R=4
SLOT=16384
MAIL=R*SLOT

def gen(W=24, pol='nt', polv=None, mapping=1, ts=False, spin=1<<16, cyc=False, THR=8.0, lprio=0,
        nodma=False, nocomp=False, NS=48, dyn=True, psleep=1, HSI=None, noepi=False, opol='', csh=10,
        touch=8, lw0=False, early=False, chk=False, pwait=None, pollop='load', flop='store', tmode=0, tpol='sc1', xp='sc1', xst='sc1', prof=False, lprof=0, nv=None, npoll=1, xr=None, gx=None, pat='r0 r1 t0 t1 n0 n1 n2 t2 t3 t4 t5 t6 t7'):
    if polv is None: polv=pol
    toks=pat.split(); assert sorted(toks)==sorted(['r0','r1','n0','n1','n2']+[f't{i}' for i in range(8)])
    pos={x:8+i for i,x in enumerate(toks)}
    def noff(n): return sum(((n>>b)&1)<<pos[f'n{b}'] for b in range(3))
    runs=[]
    for b in range(8):
        if runs and runs[-1][0]+runs[-1][1]==b and runs[-1][2]+runs[-1][1]==pos[f't{b}']:
            runs[-1]=(runs[-1][0],runs[-1][1]+1,runs[-1][2])
        else: runs.append((b,1,pos[f't{b}']))
    a=A()
    lds=MAIL+16384+128
    NTOT=256
    if not dyn: NS=64
    if HSI is None: HSI=NS-12
    if xr: assert NS%(xr[1]+1)==0
    def stamp(i):
        if ts:
            a(f"{'s_memtime' if (cyc and i in (6,7)) else 's_memrealtime'} s[{60+2*i}:{61+2*i}]")
    a(f"""
    s_cmp_ge_u32 s2, 256
    s_cbranch_scc1 L_done
    s_load_dwordx4 s[4:7], s[0:1], 0
    s_load_dwordx4 s[8:11], s[0:1], 16
    s_load_dwordx4 s[12:15], s[0:1], 32
    """)
    stamp(0)
    a("""
    v_lshrrev_b32 v2, 6, v0
    v_and_b32 v3, 63, v0
    v_readfirstlane_b32 s24, v2
    """)
    if mapping==0:
        a("""
        s_lshr_b32 s25, s2, 5
        s_lshl_b32 s25, s25, 3
        s_and_b32 s26, s2, 7
        s_or_b32 s25, s25, s26
        s_lshr_b32 s26, s2, 3
        s_and_b32 s26, s26, 3
        """)
    elif mapping==1:
        a("""
        s_lshr_b32 s25, s2, 2
        s_and_b32 s26, s2, 3
        """)
    elif mapping==2:
        a("""
        s_and_b32 s26, s2, 7
        s_lshr_b32 s27, s26, 1
        s_xor_b32 s26, s26, s27
        s_and_b32 s26, s26, 1
        s_lshr_b32 s25, s2, 3
        s_lshl_b32 s25, s25, 1
        s_or_b32 s25, s25, s26
        s_mov_b32 s26, s27
        """)
    elif mapping==3:
        a("""
        s_and_b32 s26, s2, 1
        s_lshr_b32 s25, s2, 3
        s_lshl_b32 s25, s25, 1
        s_or_b32 s25, s25, s26
        s_lshr_b32 s26, s2, 1
        s_and_b32 s26, s26, 3
        """)
    if lw0:
        a("""
        s_cmp_lg_u32 s24, 0
        s_cbranch_scc0 L_load
        s_sub_u32 s24, s24, 1
        s_branch L_comp
        """)
        a.label("L_load")
    else:
        a(f"""
        s_cmp_lt_u32 s24, 4
        s_cbranch_scc1 L_comp
        """)
    if lprio: a(f"s_setprio {lprio}")
    a(f"""
    s_lshl_b32 s29, s25, 21
    v_lshrrev_b32 v4, 4, v3      ; rr
    v_and_b32 v5, 15, v3         ; c'
    v_lshlrev_b32 v6, 1, v4      ; f = rr<<1
    v_xor_b32 v5, v5, v6
    v_lshlrev_b32 v5, 4, v5
    v_and_b32 v6, 1, v4
    v_lshl_add_u32 v5, v6, {pos['r0']}, v5
    v_lshrrev_b32 v6, 1, v4
    v_lshl_add_u32 v1, v6, {pos['r1']}, v5
    v_xor_b32 v2, 0x80, v1
    s_mov_b32 s31, 0
    s_mul_i32 s46, s26, {NS}
    {f's_bfe_u32 s51, s2, 0x{((xr[1].bit_length())<<16)|xr[0]:x}' if xr else ''}
    s_mov_b32 s49, 0x7fffffff    ; E
    s_mov_b32 s55, 0
    v_mov_b32 v21, s49
    v_mov_b32 v22, {MAIL}
    v_mov_b32 v23, 0
    v_mov_b32 v24, 1
    v_mov_b32 v20, 0
    ds_write_b32 v22, v21
    """)
    for (sh,mk,ls) in (gx or []):
        a(f"""
        s_lshr_b32 s52, s25, {sh}
        s_and_b32 s52, s52, {mk}
        s_lshl_b32 s52, s52, {ls}
        s_xor_b32 s55, s55, s52
        """)
    def tile_off():
        if gx: a("s_xor_b32 s32, s32, s55")
        if len(runs)==1:
            a(f"s_lshl_b32 s32, s32, {runs[0][2]}")
        else:
            for i,(b,ln,ab) in enumerate(runs):
                d = "s52" if i==0 else "s53"
                a(f"s_bfe_u32 {d}, s32, 0x{(ln<<16)|b:x}")
                a(f"s_lshl_b32 {d}, {d}, {ab}")
                if i: a("s_add_u32 s52, s52, s53")
            a("s_mov_b32 s32, s52")
    if early:
        assert not xr
        for i in range(R-1):
            a(f"s_add_u32 s32, s46, {i}")
            tile_off()
            a(f"s_mov_b32 s{56+i}, s32")
        a("s_mov_b32 s18, 0x200000")
        a("s_mov_b32 s19, 0x20000")
        a("s_mov_b32 s22, 0x200000")
        a("s_mov_b32 s23, 0x20000")
    a(f"""
    s_waitcnt lgkmcnt(0)
    {'s_memrealtime s[72:73]' if lprof else ''}
    s_add_u32 s16, s6, s29
    s_addc_u32 s17, s7, 0
    {'' if early else 's_mov_b32 s18, 0x200000'}
    {'' if early else 's_mov_b32 s19, 0x20000'}
    s_add_u32 s20, s8, s29
    s_addc_u32 s21, s9, 0
    {'' if early else 's_mov_b32 s22, 0x200000'}
    {'' if early else 's_mov_b32 s23, 0x20000'}
    s_lshl_b32 s30, s25, {csh}
    s_add_u32 s38, s14, s30
    s_addc_u32 s39, s15, 0
    """)
    def issue(win):
        if not nodma:
            for (srd,lo) in [(16,0),(20,8192)]:
                for h in range(2):
                    a(f"s_add_u32 s33, s31, {lo+h*4096}")
                    a(f"s_mov_b32 m0, s33")
                    lin = all(noff(4*h+n)==noff(4*h)+n*1024 for n in range(4))
                    if lin: a(f"s_add_u32 s35, s32, {noff(4*h)}")
                    for n in range(4):
                        assert noff(4*h+n)-n*1024>=0
                        if not lin: a(f"s_add_u32 s35, s32, {noff(4*h+n)-n*1024}")
                        if win and W: a(f"s_waitcnt vmcnt({W-1})")
                        a(f"buffer_load_dwordx4 v{1+(n&1)}, s[{srd}:{srd+3}], s35 offen offset:{n*1024} {pol if srd==16 else polv} lds")
        a(f"s_add_u32 s31, s31, {SLOT}")
        a(f"s_and_b32 s31, s31, {R*SLOT-1}")
    for i in range(R-1):
        if early: a(f"s_mov_b32 s32, s{56+i}")
        elif xr:
            a(f"s_xor_b32 s32, s51, {i}")
            a(f"s_add_u32 s32, s32, s46")
        else: a(f"s_add_u32 s32, s46, {i}")
        if not early: tile_off()
        issue(i*16+16>W if W else False)
    a(f"s_mov_b32 s36, 0")
    a.label("L_lloop")
    a(f"""
    s_waitcnt vmcnt({(R-2)*16}) lgkmcnt(0)
    s_cmp_eq_u32 s36, s49
    s_cbranch_scc1 L_lend
    """)
    if lprof:
        a(f"""
        s_cmp_eq_u32 s36, {lprof-1}
        s_cbranch_scc0 L_lp
        s_memrealtime s[74:75]
        s_waitcnt lgkmcnt(0)
        """)
        a.label("L_lp")
    a(f"""
    s_barrier
    s_add_u32 s47, s36, {R-1}      ; n
    {'s_xor_b32 s32, s51, s47' if xr else 's_mov_b32 s32, s47'}
    s_add_u32 s32, s46, s32
    s_cmp_lt_u32 s47, {NS}
    s_cbranch_scc1 L_static
    """)
    if dyn:
        a(f"""
        s_and_b32 s48, s47, 3
        v_readlane_b32 s32, v20, s48
        s_nop 3
        s_add_u32 s32, s32, {4*NS}
        """)
    else:
        a(f"s_mov_b32 s32, {NTOT}")
    a(f"""
    s_cmp_lt_u32 s32, {NTOT}
    s_cselect_b32 s18, 0x200000, 0
    s_cselect_b32 s22, 0x200000, 0
    s_cselect_b32 s48, s49, s47
    s_min_u32 s49, s49, s48
    v_mov_b32 v21, s49
    ds_write_b32 v22, v21
    """)
    a.label("L_static")
    tile_off()
    issue(True)
    a(f"""
    s_cmp_eq_u32 s36, {HSI}
    s_cbranch_scc0 L_nohs1
    global_load_dwordx2 v[26:27], v23, s[12:13] {xp}
    """)
    a.label("L_nohs1")
    a(f"""
    s_cmp_eq_u32 s36, {HSI+R-1}
    s_cbranch_scc0 L_nohs2
    s_mov_b32 s50, {spin}
    """)
    a.label("L_lhs")
    a(f"""
    v_readfirstlane_b32 s48, v26
    s_sub_u32 s50, s50, 1
    s_cmp_eq_u32 s50, 0
    s_cbranch_scc1 L_hsok
    s_cmp_lg_u32 s48, 0
    s_cbranch_scc1 L_hsok
    global_load_dwordx2 v[26:27], v23, s[12:13] {xp}
    s_waitcnt vmcnt(0)
    s_branch L_lhs
    """)
    a.label("L_hsok")
    a("ds_write_b64 v22, v[26:27] offset:8")
    a.label("L_nohs2")
    if dyn:
        assert HSI+R-1 < NS-2*(R-1)
        a(f"""
        s_cmp_lt_u32 s36, {NS-2*(R-1)}
        s_cbranch_scc1 L_noclaim
        s_add_u32 s48, s36, {2*(R-1)}
        s_and_b32 s48, s48, 3
        s_lshl_b64 exec, 1, s48
        global_atomic_add v20, v23, v24, s[38:39] sc0
        s_mov_b64 exec, -1
        """)
        a.label("L_noclaim")
    a(f"""
    s_add_u32 s36, s36, 1
    s_branch L_lloop
    """)
    a.label("L_lend")
    a("s_waitcnt vmcnt(0)")
    if lprof:
        a(f"""
        s_lshl_b32 s3, s2, 6
        s_add_u32 s14, s14, s3
        s_addc_u32 s15, s15, 0
        s_add_u32 s14, s14, {TS_OFF}
        s_addc_u32 s15, s15, 0
        v_mov_b32 v32, s72
        v_mov_b32 v33, s73
        v_mov_b32 v34, s74
        v_mov_b32 v35, s75
        v_mov_b32 v8, 0
        global_store_dwordx4 v8, v[32:35], s[14:15] offset:48
        s_waitcnt vmcnt(0)
        """)
    a("s_endpgm")

    a.label("L_comp")
    a(f"""
    v_and_b32 v4, 15, v3
    v_lshrrev_b32 v5, 4, v3       ; g
    s_lshl_b32 s27, s25, 2
    s_add_u32 s27, s27, s24       ; 4p+w
    s_lshl_b32 s28, s27, 12
    v_lshlrev_b32 v6, 8, v4
    v_lshl_add_u32 v7, v5, 4, v6    ; q*256+g*16
    s_waitcnt lgkmcnt(0)
    s_add_u32 s4, s4, s28
    s_addc_u32 s5, s5, 0
    """)
    for s in range(4):
        a(f"global_load_dwordx4 v[{Q0+4*s}:{Q0+4*s+3}], v7, s[4:5] offset:{64*s}")
    a(f"""
    s_or_b32 s30, s2, s24
    s_cmp_lg_u32 s30, 0
    s_cbranch_scc1 L_noclear
    s_memrealtime s[50:51]
    v_mov_b32 v8, 0
    v_mov_b32 v9, 0
    v_mov_b32 v10, 0
    v_mov_b32 v11, 0
    v_lshlrev_b32 v12, {csh}, v3
    global_store_dwordx4 v12, v[8:11], s[14:15] {xp}
    s_waitcnt vmcnt(0) lgkmcnt(0)
    s_or_b32 s50, s50, 1
    v_mov_b32 v14, s50
    v_mov_b32 v15, s51
    s_mov_b64 exec, 1
    global_store_dwordx2 v8, v[14:15], s[12:13] {xp}
    s_mov_b64 exec, -1
    """)
    a.label("L_noclear")
    a(f"""
    s_lshl_b32 s28, s27, 15        ; (4p+w)*32KiB
    s_add_u32 s40, s14, s28
    s_addc_u32 s41, s15, 0
    s_add_u32 s40, s40, {XB_OFF}
    s_addc_u32 s41, s41, 0
    s_lshl_b32 s28, s27, 12
    s_add_u32 s10, s10, s28
    s_addc_u32 s11, s11, 0
    v_lshlrev_b32 v7, 4, v3        ; lane*16
    v_lshlrev_b32 v6, 8, v4        ; q*256
    v_lshl_add_u32 v6, v5, 3, v6   ; + g*8
    s_lshl_b32 s28, s26, 6         ; 2j*32
    v_add_u32 v{OADR}, s28, v6
    s_lshl_b32 s28, s26, 8
    s_add_u32 s28, s28, {XB_ML}
    v_lshl_add_u32 v{MLO}, v4, 4, s28
    s_lshl_b32 s28, s26, 7
    s_add_u32 s28, s28, {XB_FL}
    v_mov_b32 v{FLO}, s28
    v_and_b32 v8, 3, v3
    v_lshlrev_b32 v8, 7, v8
    v_add_u32 v{FLP}, {XB_FL}, v8
    """)
    if chk:
        a(f"""
        v_and_b32 v8, 3, v3
        s_add_u32 s28, s26, 1
        v_add_u32 v8, s28, v8
        v_and_b32 v8, 3, v8
        v_lshrrev_b32 v9, 2, v3
        v_lshlrev_b32 v9, 3, v9        ; quad * 8
        s_lshl_b32 s28, s26, 7
        s_add_u32 s28, s28, {XB_CK}
        v_lshl_add_u32 v10, v8, 9, v9
        v_add_u32 v{FLO}, s28, v10
        s_lshl_b32 s28, s26, 9
        s_add_u32 s28, s28, {XB_CK}
        v_lshl_add_u32 v10, v8, 7, v9
        v_add_u32 v{FLP}, s28, v10
        s_mov_b32 s84, 0x11111111
        s_mov_b32 s85, 0x11111111
        s_mov_b32 s86, 0x22222222
        s_mov_b32 s87, 0x22222222
        s_mov_b32 s88, 0x77777777
        s_mov_b32 s89, 0x77777777
        """)
        for i,c in enumerate(CKC): a(f"s_mov_b32 s{76+i}, 0x{c:x}")
        a("s_mov_b32 s90, 4096          ; bound on the reload loop")
    for u in range(1,4):
        a(f"""
        s_add_u32 s28, s26, {u}
        s_and_b32 s28, s28, 3
        s_lshl_b32 s29, s28, 2
        s_add_u32 s29, s29, s26
        s_lshl_b32 s29, s29, 10
        v_add_u32 v{XAO+u-1}, s29, v7
        s_lshl_b32 s29, s26, 2
        s_add_u32 s29, s29, s28
        s_lshl_b32 s29, s29, 10
        v_add_u32 v{XAI+u-1}, s29, v7
        s_lshl_b32 s29, s28, 8
        s_add_u32 s29, s29, {XB_ML}
        v_lshl_add_u32 v{MLI+u-1}, v4, 4, s29
        """)
    a(f"""
    v_and_b32 v7, 7, v4
    v_lshlrev_b32 v7, 1, v7
    v_xor_b32 v7, v7, v5
    v_lshlrev_b32 v7, 4, v7
    v_lshl_add_u32 v{KA}, v4, 8, v7
    """)
    for s in range(1,4):
        a(f"v_xor_b32 v{KA+s}, {s<<6}, v{KA}")
    a(f"""
    v_lshrrev_b32 v7, 2, v4        ; r
    v_lshl_add_u32 v7, v5, 2, v7   ; key=4g+r
    v_and_b32 v14, 7, v7           ; k7
    v_and_b32 v15, 3, v3           ; c
    v_lshlrev_b32 v15, 3, v15      ; c*8
    v_lshl_add_u32 v15, v7, 8, v15 ; key*256 + c*8
    v_lshl_add_u32 v15, v14, 5, v15 ; + k7<<5      (db=0)
    s_lshl_b32 s30, s26, 1
    """)
    for t in range(8):
        a(f"s_add_u32 s34, s30, {t}")
        a(f"s_and_b32 s34, s34, 7")
        a(f"s_lshl_b32 s34, s34, 5")
        a(f"v_xor_b32 v{VB+t}, s34, v15")
    for i in range(32): a(f"v_mov_b32 v{O0+i}, 0")
    for i in range(4): a(f"v_mov_b32 v{L0+i}, 0")
    for i in range(4): a(f"v_mov_b32 v{ONE+i}, 0x3f803f80")
    for i in range(32): a(f"v_mov_b32 v{VA+32+i}, 0")
    for i in range(8): a(f"v_mov_b32 v{SS+8+i}, 0xff800000")
    a(f"""
    v_mov_b32 v{VM}, 0xff61b1e6
    v_mov_b32 v{VMC}, 0xff61b1e6
    v_mov_b32 v{VTH}, 0xff61b1e6
    v_mov_b32 v{VMAILA}, {MAIL}
    s_mov_b32 s37, 0x{C_SCALE:x}
    s_mov_b32 s44, 0x{fbits(THR/CF):x}
    s_mov_b32 s36, 0
    s_lshl_b32 s45, 1, s26
    s_waitcnt vmcnt(0)
    """)
    if cyc: stamp(6); a("s_waitcnt lgkmcnt(0)")

    def check(sb, lbl):
        S=SS+8*sb
        a(f"""
        v_max3_f32 v{T0}, v{S}, v{S+1}, v{S+2}
        v_max3_f32 v{T1}, v{S+3}, v{S+4}, v{S+5}
        v_max3_f32 v{T0}, v{T0}, v{S+6}, v{S+7}
        v_max_f32 v{T0}, v{T0}, v{T1}
        v_cmp_gt_f32 vcc, v{T0}, v{VTH}
        s_cbranch_vccnz L_rare{lbl}
        """)
        a.label(f"L_ret{lbl}")
    def softmax_B(sb):
        S=SS+8*sb
        for i in range(8): a(f"v_fma_f32 v{S+i}, v{S+i}, s37, -v{VMC}")
        for i in range(8): a(f"v_exp_f32 v{S+i}, v{S+i}")
        for i in range(4): a(f"v_cvt_pk_bf16_f32 v{P0+i}, v{S+2*i}, v{S+2*i+1}")
    def pv(vb, t):
        V=VA+32*vb
        a(f"v_mfma_f32_16x16x32_bf16 v[{O0+4*t}:{O0+4*t+3}], v[{V+4*t}:{V+4*t+3}], v[{P0}:{P0+3}], v[{O0+4*t}:{O0+4*t+3}]")
    def lsum():
        a(f"v_mfma_f32_16x16x32_bf16 v[{L0}:{L0+3}], v[{ONE}:{ONE+3}], v[{P0}:{P0+3}], v[{L0}:{L0+3}]")
    def rare(lbl):
        a.label(f"L_rare{lbl}")
        a(f"""
        v_max_f32 v{T0}, v{T0}, v{VM}
        v_mov_b32 v{T1}, v{T0}
        s_nop 1
        v_permlane16_swap_b32 v{T0}, v{T1}
        v_max_f32 v{T0}, v{T0}, v{T1}
        v_mov_b32 v{T1}, v{T0}
        s_nop 1
        v_permlane32_swap_b32 v{T0}, v{T1}
        v_max_f32 v{VM}, v{T0}, v{T1}
        v_mul_f32 v{T2}, s37, v{VM}
        v_add_f32 v{VTH}, s44, v{VM}
        v_sub_f32 v{T3}, v{VMC}, v{T2}
        v_exp_f32 v{T3}, v{T3}
        v_mov_b32 v{VMC}, v{T2}
        s_nop 0
        """)
        for i in range(4): a(f"v_mul_f32 v{L0+i}, v{T3}, v{L0+i}")
        for i in range(32): a(f"v_mul_f32 v{O0+i}, v{T3}, v{O0+i}")
        a(f"s_branch L_ret{lbl}")

    a.label("L_cloop")
    for r in range(R):
        cur=r&1; prev=cur^1
        base=r*SLOT
        S=SS+8*cur
        V=VA+32*cur
        a("s_barrier")
        if prof and r==0:
            for (it,sl) in ((4,3),(24,6),(44,7)):
                a(f"s_cmp_eq_u32 s36, {it}")
                a(f"s_cbranch_scc0 L_pr{sl}")
                a(f"s_memrealtime s[{60+2*sl}:{61+2*sl}]")
                a("s_waitcnt lgkmcnt(0)")
                a.label(f"L_pr{sl}")
        if r==0 and touch and not noepi:
            a(f"s_cmp_eq_u32 s36, {touch}")
            a("s_cbranch_scc1 L_touch")
            a.label("L_touchret")
        a(f"ds_read_b32 v{VMAIL}, v{VMAILA}")
        if not nocomp:
            for kb in range(2):
                for s in range(4):
                    a(f"ds_read_b128 v[{K0+16*kb+4*s}:{K0+16*kb+4*s+3}], v{KA+s} offset:{base+kb*4096}")
            check(prev, r)
            softmax_B(prev)
            def vread(t,hb):
                a(f"ds_read_b64_tr_b16 v[{V+4*t+2*hb}:{V+4*t+2*hb+1}], v{VB+t} offset:{base+8192+hb*4096}")
            def qk(kb,s):
                c = "0" if s==0 else f"v[{S+4*kb}:{S+4*kb+3}]"
                a(f"v_mfma_f32_16x16x32_bf16 v[{S+4*kb}:{S+4*kb+3}], v[{K0+16*kb+4*s}:{K0+16*kb+4*s+3}], v[{Q0+4*s}:{Q0+4*s+3}], {c}")
            vread(0,0); vread(0,1)
            lsum()
            vread(1,0); vread(1,1)
            pv(prev,0)
            vread(2,0); vread(2,1)
            pv(prev,1)
            a("s_waitcnt lgkmcnt(6)")
            for t in range(2,6):
                pv(prev,t); vread(t+1,0); vread(t+1,1)
            pv(prev,6)
            vread(7,0)
            pv(prev,7)
            a("s_waitcnt lgkmcnt(14)")
            vread(7,1)
            for s in range(4): qk(0,s); qk(1,s)
        a(f"s_add_u32 s36, s36, 1")
        a(f"s_waitcnt lgkmcnt(0)")
        a(f"v_cmp_eq_u32 vcc, s36, v{VMAIL}")
        a(f"s_cbranch_vccnz L_drain{cur}")
    a("s_branch L_cloop")
    if touch and not noepi:
        assert touch%R==0
        a.label("L_touch")
        if tmode==0:
            a(f"""
            s_mov_b64 exec, 1
            global_load_dword v{DUM}, v{FLO}, s[40:41]
            global_load_dword v{DUM}, v{OADR}, s[10:11]
            s_mov_b64 exec, -1
            s_branch L_touchret
            """)
        else:
            a(f"""
            s_mov_b64 exec, 15
            global_load_dword v{DUM}, v{FLP}, s[40:41] {tpol}
            s_mov_b64 exec, -1
            s_branch L_touchret
            """)
    for par in range(2):
        a.label(f"L_drain{par}")
        a(f"ds_read_b64 v[{VMAIL}:{VMAIL+1}], v{VMAILA} offset:8")
        if not nocomp:
            a("s_nop 7")
            check(par, f"d{par}")
            softmax_B(par)
            a("s_nop 1")
            lsum()
            for t in (2,3,4,5,6,7,0,1): pv(par,t)
        a("s_branch L_epi")
    if not nocomp:
        for r in range(R): rare(r)
        rare("d0"); rare("d1")
    a.label("L_epi")
    stamp(1)
    if cyc: stamp(7)
    if not noepi:
        o=O0+8
        pregs=[76,78,80,82]
        def pcmp(rg):
            if chk: return f"v_cmp_eq_u32 vcc, v{rg+1}, v{VMAIL}"
            return f"v_cmp_eq_u64 vcc, v[{rg}:{rg+1}], v[{VMAIL}:{VMAIL+1}]"
        def pollins(rg):
            if pollop=='load': return f"global_load_dwordx2 v[{rg}:{rg+1}], v{FLP}, s[40:41] {xp}"
            return f"global_atomic_add_x2 v[{rg}:{rg+1}], v{FLP}, v[84:85], s[40:41] {pollop}"
        if pollop!='load':
            a("v_mov_b32 v84, 0")
            a("v_mov_b32 v85, 0")
        a("s_nop 4")
        a(f"v_max3_f32 v{T0}, |v{o}|, |v{o+1}|, |v{o+2}|")
        a(f"v_max3_f32 v{T1}, |v{o+3}|, |v{o+4}|, |v{o+5}|")
        k=6; t=0
        while k<24:
            tr=(T0,T1)[t&1]
            a(f"v_max3_f32 v{tr}, v{tr}, |v{o+k}|, |v{o+k+1}|")
            k+=2; t+=1
        a(f"""
        v_max_f32 v{T0}, v{T0}, v{T1}
        v_mov_b32 v{GM}, v{VMC}
        v_mov_b32 v{T1}, v{T0}
        v_mov_b32 v{GM+1}, v{L0}
        s_nop 0
        v_permlane16_swap_b32 v{T0}, v{T1}
        v_max_f32 v{T0}, v{T0}, v{T1}
        v_mov_b32 v{T1}, v{T0}
        v_mov_b32 v{GM+3}, 0
        s_nop 0
        v_permlane32_swap_b32 v{T0}, v{T1}
        v_max_f32 v{T0}, v{T0}, v{T1}
        v_frexp_exp_i32_f32 v{T1}, v{T0}
        v_sub_u32 v{T1}, 15, v{T1}
        v_min_i32 v{GM+2}, 0x7e, v{T1}
        v_ldexp_f32 v12, 1.0, v{GM+2}
        """)
        CS=60; CU=[61,62,63]
        def dpp2():
            for (qp,pre) in (("[1,0,3,2]",True),("[2,3,0,1]",False)):
                a(f"v_add_u32_dpp v{CU[0]}, v{CU[0]}, v{CU[0]} quad_perm:{qp} row_mask:0xf bank_mask:0xf")
                a(f"v_add_u32_dpp v{CU[1]}, v{CU[1]}, v{CU[1]} quad_perm:{qp} row_mask:0xf bank_mask:0xf")
                if pre: a("s_nop 0")
                a(f"v_add_u32_dpp v{CU[2]}, v{CU[2]}, v{CU[2]} quad_perm:{qp} row_mask:0xf bank_mask:0xf")
        if chk:
            a(f"""
            s_mov_b64 exec, 0xffff
            global_store_dwordx4 v{MLO}, v[{GM}:{GM+3}], s[40:41] {xst}
            s_mov_b64 exec, -1
            s_waitcnt lgkmcnt(0)
            v_dot2_u32_u16 v{CS}, v{GM}, s80, v{VMAIL+1}
            v_dot2_u32_u16 v{CS}, v{GM+1}, s81, v{CS}
            v_dot2_u32_u16 v{CS}, v{GM+2}, s82, v{CS}
            """)
        for u in range(1,4):
            ob=O0+8*u; g=G0+4*(u-1)
            for i in range(4):
                a(f"v_pk_mul_f32 v[{ob+2*i}:{ob+2*i+1}], v[{ob+2*i}:{ob+2*i+1}], v[12:13] op_sel_hi:[1,0]")
            for i in range(4):
                a(f"v_cvt_pk_f16_f32 v{g+i}, v{ob+2*i}, v{ob+2*i+1}")
            if chk!=2: a(f"global_store_dwordx4 v{XAO+u-1}, v[{g}:{g+3}], s[40:41] {xst}")
            if chk:
                for i in range(4):
                    a(f"v_dot2_u32_u16 v{CU[u-1]}, v{g+i}, s{76+i}, v{CS if i==0 else CU[u-1]}")
        if chk:
            dpp2()
            a(f"""
            v_cndmask_b32 v14, v{CU[2]}, v{CU[1]}, s[86:87]
            v_mov_b32 v15, v{VMAIL}
            v_cndmask_b32 v14, v14, v{CU[0]}, s[84:85]
            s_mov_b64 exec, s[88:89]
            global_store_dwordx2 v{FLO}, v[14:15], s[40:41] {xst}
            """)
            if chk==2:
                a("s_mov_b64 exec, -1")
                for u in range(1,4):
                    g=G0+4*(u-1)
                    a(f"global_store_dwordx4 v{XAO+u-1}, v[{g}:{g+3}], s[40:41] {xst}")
        else:
          a(f"""
        s_mov_b64 exec, 0xffff
        global_store_dwordx4 v{MLO}, v[{GM}:{GM+3}], s[40:41] {xst}
        s_mov_b64 exec, 1
        s_waitcnt vmcnt(0) lgkmcnt(0)
        {f"global_store_dwordx2 v{FLO}, v[{VMAIL}:{VMAIL+1}], s[40:41] {xst}" if flop=='store' else f"global_atomic_swap_x2 v{FLO}, v[{VMAIL}:{VMAIL+1}], s[40:41] {flop}"}
        """)
        stamp(2)
        a(f"""
        {'s_mov_b32 s46, 7' if chk else 's_andn2_b32 s46, 15, s45'}
        s_mov_b32 s47, 0
        s_mov_b64 exec, s[46:47]
        s_mov_b32 s36, {spin}
        """)
        if npoll==1:
            a("s_branch L_poll0")
            a.label("L_poll")
            if psleep: a(f"s_sleep {psleep}")
            a.label("L_poll0")
            a(f"""
            {pollins(pregs[0])}
            s_sub_u32 s36, s36, 1
            s_cmp_eq_u32 s36, 0
            s_cbranch_scc1 L_poll_ok
            s_waitcnt vmcnt(0)
            {pcmp(pregs[0])}
            s_cmp_eq_u32 vcc_lo, s46
            s_cbranch_scc0 L_poll
            """)
        else:
            regs=pregs[:npoll]
            for i,rg in enumerate(regs):
                a(pollins(rg))
                if i<npoll-1: a(f"s_sleep {psleep}")
            a.label("L_poll")
            for i,rg in enumerate(regs):
                a(f"""
                s_waitcnt vmcnt({npoll-1})
                {pcmp(rg)}
                s_cmp_eq_u32 vcc_lo, s46
                s_cbranch_scc1 L_poll_ok
                {pollins(rg)}
                """)
            a(f"""
            s_sub_u32 s36, s36, 1
            s_cmp_eq_u32 s36, 0
            s_cbranch_scc0 L_poll
            """)
        a.label("L_poll_ok")
        a("s_mov_b64 exec, -1")
        stamp(3)
        if pwait: a("s_waitcnt vmcnt(0)")
        AC=88
        if chk: a.label("L_reload")
        for u in range(1,4):
            a(f"global_load_dwordx4 v[{XML+4*(u-1)}:{XML+4*(u-1)+3}], v{MLI+u-1}, s[40:41] {xp}")
        for u in range(1,4):
            a(f"global_load_dwordx4 v[{X0+4*(u-1)}:{X0+4*(u-1)+3}], v{XAI+u-1}, s[40:41] {xp}")
        nl=3
        if chk:
            a(f"""
            s_mov_b64 exec, s[88:89]
            global_load_dwordx2 v[86:87], v{FLP}, s[40:41] {xp}
            s_mov_b64 exec, -1
            """)
            nl=4
        a(f"s_waitcnt vmcnt({nl})")
        m=[VMC, XML, XML+4, XML+8]
        l=[L0, XML+1, XML+5, XML+9]
        kk=[None, XML+2, XML+6, XML+10]
        if chk:
            for u in range(1,4):
                a(f"v_dot2_u32_u16 v{CU[u-1]}, v{m[u]}, s80, v{VMAIL+1}")
            for u in range(1,4):
                a(f"v_dot2_u32_u16 v{CU[u-1]}, v{l[u]}, s81, v{CU[u-1]}")
            for u in range(1,4):
                a(f"v_dot2_u32_u16 v{CU[u-1]}, v{kk[u]}, s82, v{CU[u-1]}")
        a(f"""
        v_max3_f32 v{T0}, v{m[0]}, v{m[1]}, v{m[2]}
        v_max_f32 v{T0}, v{T0}, v{m[3]}
        v_sub_f32 v12, v{m[0]}, v{T0}
        v_sub_f32 v13, v{m[1]}, v{T0}
        v_sub_f32 v14, v{m[2]}, v{T0}
        v_sub_f32 v15, v{m[3]}, v{T0}
        v_exp_f32 v12, v12
        v_exp_f32 v13, v13
        v_exp_f32 v14, v14
        v_exp_f32 v15, v15
        v_sub_u32 v{kk[1]}, 0, v{kk[1]}
        v_sub_u32 v{kk[2]}, 0, v{kk[2]}
        v_sub_u32 v{kk[3]}, 0, v{kk[3]}
        v_mul_f32 v{T1}, v{l[0]}, v12
        v_fmac_f32 v{T1}, v{l[1]}, v13
        v_fmac_f32 v{T1}, v{l[2]}, v14
        v_fmac_f32 v{T1}, v{l[3]}, v15
        v_rcp_f32 v{T3}, v{T1}
        v_ldexp_f32 v13, v13, v{kk[1]}
        v_ldexp_f32 v14, v14, v{kk[2]}
        v_ldexp_f32 v15, v15, v{kk[3]}
        """)
        for i in range(8):
            a(f"v_mul_f32 v{AC+i}, v{O0+i}, v12")
        a(f"""
        v_fma_f32 v{T2}, -v{T1}, v{T3}, 1.0
        v_fmac_f32 v{T3}, v{T3}, v{T2}
        """)
        a("s_waitcnt vmcnt(0)")
        stamp(4)
        def mix(u):
            for i in range(8):
                a(f"v_fma_mix_f32 v{AC+i}, v{X0+4*(u-1)+i//2}, v{12+u}, v{AC+i} op_sel:[{i&1},0,0] op_sel_hi:[1,0,0]")
        if chk:
            for i in range(4):
                for u in range(1,4):
                    a(f"v_dot2_u32_u16 v{CU[u-1]}, v{X0+4*(u-1)+i}, s{76+i}, v{CU[u-1]}")
            mix(1)
            for u in range(3): a(f"v_add_u32_dpp v{CU[u]}, v{CU[u]}, v{CU[u]} quad_perm:[1,0,3,2] row_mask:0xf bank_mask:0xf")
            mix(2)
            for u in range(3): a(f"v_add_u32_dpp v{CU[u]}, v{CU[u]}, v{CU[u]} quad_perm:[2,3,0,1] row_mask:0xf bank_mask:0xf")
            mix(3)
            a(f"""
            v_cndmask_b32 v{T0}, v{CU[2]}, v{CU[1]}, s[86:87]
            v_cndmask_b32 v{T0}, v{T0}, v{CU[0]}, s[84:85]
            v_cmp_ne_u32 vcc, v{T0}, v86
            s_and_b64 vcc, vcc, s[88:89]
            s_cbranch_scc0 L_verified
            s_sub_u32 s90, s90, 1
            s_cmp_eq_u32 s90, 0
            s_cbranch_scc0 L_reload
            """)
            a.label("L_verified")
        else:
            for u in range(1,4): mix(u)
        for i in range(8):
            a(f"v_mul_f32 v{O0+i}, v{AC+i}, v{T3}")
        a(f"""
        v_cvt_pk_bf16_f32 v12, v{O0}, v{O0+1}
        v_cvt_pk_bf16_f32 v13, v{O0+2}, v{O0+3}
        v_cvt_pk_bf16_f32 v14, v{O0+4}, v{O0+5}
        v_cvt_pk_bf16_f32 v15, v{O0+6}, v{O0+7}
        global_store_dwordx2 v{OADR}, v[12:13], s[10:11] {opol}
        global_store_dwordx2 v{OADR}, v[14:15], s[10:11] offset:32 {opol}
        """)
    if ts:
        a("s_waitcnt vmcnt(0)")
        a("v_mov_b32 v8, 0")
        stamp(5)
        a(f"""
        s_waitcnt lgkmcnt(0)
        s_cmp_lg_u32 s24, 0
        s_cbranch_scc1 L_done
        s_lshl_b32 s3, s2, 6
        s_add_u32 s14, s14, s3
        s_addc_u32 s15, s15, 0
        s_add_u32 s14, s14, {TS_OFF}
        s_addc_u32 s15, s15, 0
        """)
        if cyc:
            a("s_sub_u32 s72, s74, s72")
            a("s_mov_b32 s73, 0")
        elif not prof:
            a("s_mov_b32 s72, s90" if chk else "s_mov_b32 s72, s36")
            a("s_mov_b32 s73, 0")
        if not prof:
            a("s_mov_b32 s74, 0")
            a("s_mov_b32 s75, 0")
        for i in range(0,6 if lprof else 8,2):
            a(f"""
            v_mov_b32 v{32+2*i}, s{60+2*i}
            v_mov_b32 v{33+2*i}, s{61+2*i}
            v_mov_b32 v{34+2*i}, s{62+2*i}
            v_mov_b32 v{35+2*i}, s{63+2*i}
            global_store_dwordx4 v8, v[{32+2*i}:{35+2*i}], s[14:15] offset:{8*i}
            """)
    a.label("L_done")
    a("s_endpgm")
    txt=HDR+f"; @launch grid=(256,1,1) block=(320,1,1) lds={lds}\n"+'.amdgcn_target "amdgcn-amd-amdhsa--gfx950"\n.text\n'+kernel_head(NAME)+a.text()+'.section .rodata,"a"\n.p2align 6\n'+kernel_desc(NAME,nv or NVGPR)
    return txt

if __name__=='__main__':
    import ast
    out=sys.argv[1]
    kw={}
    for x in sys.argv[2:]:
        k,v=x.split('=')
        try: v=ast.literal_eval(v)
        except Exception: pass
        kw[k]=v
    open(out,'w').write(gen(**kw))
```

```python
import sys, struct
from asmlib import *

NAME='standalone__gqa_softmax__sampling_kernel'
def fbits(x): return struct.unpack('<I',struct.pack('<f',x))[0]
CF = 0.08838834764831845*1.4426950408889634
C_SCALE = fbits(CF)

Q0=16
K0=32
VA=64
SS=128
P0=144
O0=148
L0=180
ONE=184
KA=188
VB=192
VM=200; VMC=201; VTH=202
T0=203; T1=204; T2=205; T3=206
VMAILA=207; VMAIL=208
XAO=210
XAI=213
OADR=216
MLO=217
MLI=218
FLO=221
FLP=222
DUM=223
NVGPR=224
X0=32
G0=44
GM=56
XML=64

XB_OFF=1<<20
XB_ML=16384
XB_FL=16384+1024
XB_CK=16384+2048
CKC=[0x9e3579b1,0x85eb4a6b,0xc2b3ae35,0x27d52f2f,0x165767b1,0xd3a3646d,0xfd71c5a7]
TS_OFF=480<<20
R=4
SLOT=16384
MAIL=R*SLOT

def gen(W=24, pol='nt', polv=None, mapping=1, ts=False, spin=1<<16, cyc=False, THR=8.0, lprio=0,
        nodma=False, nocomp=False, NS=48, dyn=True, psleep=1, HSI=None, noepi=False, opol='', csh=10,
        touch=8, hs=False, kv=False, kvl=1, kvprof=0, lw0=False, early=False, chk=False, pwait=None, pollop='load', flop='store', tmode=0, tpol='sc1', xp='sc1', xst='sc1', prof=False, lprof=0, nv=None, npoll=1, xr=None, gx=None, pat='r0 r1 t0 t1 n0 n1 n2 t2 t3 t4 t5 t6 t7'):
    if polv is None: polv=pol
    toks=pat.split(); assert sorted(toks)==sorted(['r0','r1','n0','n1','n2']+[f't{i}' for i in range(8)])
    pos={x:8+i for i,x in enumerate(toks)}
    def noff(n): return sum(((n>>b)&1)<<pos[f'n{b}'] for b in range(3))
    runs=[]
    for b in range(8):
        if runs and runs[-1][0]+runs[-1][1]==b and runs[-1][2]+runs[-1][1]==pos[f't{b}']:
            runs[-1]=(runs[-1][0],runs[-1][1]+1,runs[-1][2])
        else: runs.append((b,1,pos[f't{b}']))
    a=A()
    lds=MAIL+16384+128
    NTOT=256
    if not dyn: NS=64
    if HSI is None: HSI=NS-12
    if xr: assert NS%(xr[1]+1)==0
    def stamp(i):
        if ts:
            a(f"{'s_memtime' if (cyc and i in (6,7)) else 's_memrealtime'} s[{60+2*i}:{61+2*i}]")
    a(f"""
    s_cmp_ge_u32 s2, 256
    s_cbranch_scc1 L_done
    s_load_dwordx4 s[4:7], s[0:1], 0
    s_load_dwordx4 s[8:11], s[0:1], 16
    s_load_dwordx4 s[12:15], s[0:1], 32
    """)
    stamp(0)
    a("""
    v_lshrrev_b32 v2, 6, v0
    v_and_b32 v3, 63, v0
    v_readfirstlane_b32 s24, v2
    """)
    if mapping==0:
        a("""
        s_lshr_b32 s25, s2, 5
        s_lshl_b32 s25, s25, 3
        s_and_b32 s26, s2, 7
        s_or_b32 s25, s25, s26
        s_lshr_b32 s26, s2, 3
        s_and_b32 s26, s26, 3
        """)
    elif mapping==1:
        a("""
        s_lshr_b32 s25, s2, 2
        s_and_b32 s26, s2, 3
        """)
    elif mapping==2:
        a("""
        s_and_b32 s26, s2, 7
        s_lshr_b32 s27, s26, 1
        s_xor_b32 s26, s26, s27
        s_and_b32 s26, s26, 1
        s_lshr_b32 s25, s2, 3
        s_lshl_b32 s25, s25, 1
        s_or_b32 s25, s25, s26
        s_mov_b32 s26, s27
        """)
    elif mapping==3:
        a("""
        s_and_b32 s26, s2, 1
        s_lshr_b32 s25, s2, 3
        s_lshl_b32 s25, s25, 1
        s_or_b32 s25, s25, s26
        s_lshr_b32 s26, s2, 1
        s_and_b32 s26, s26, 3
        """)
    if lw0:
        a("""
        s_cmp_lg_u32 s24, 0
        s_cbranch_scc0 L_load
        s_sub_u32 s24, s24, 1
        s_branch L_comp
        """)
        a.label("L_load")
    else:
        a(f"""
        s_cmp_lt_u32 s24, 4
        s_cbranch_scc1 L_comp
        """)
    if lprio: a(f"s_setprio {lprio}")
    a(f"""
    s_lshl_b32 s29, s25, 21
    v_lshrrev_b32 v4, 4, v3      ; rr
    v_and_b32 v5, 15, v3         ; c'
    v_lshlrev_b32 v6, 1, v4      ; f = rr<<1
    v_xor_b32 v5, v5, v6
    v_lshlrev_b32 v5, 4, v5
    v_and_b32 v6, 1, v4
    v_lshl_add_u32 v5, v6, {pos['r0']}, v5
    v_lshrrev_b32 v6, 1, v4
    v_lshl_add_u32 v1, v6, {pos['r1']}, v5
    v_xor_b32 v2, 0x80, v1
    s_mov_b32 s31, 0
    s_mul_i32 s46, s26, {NS}
    {f's_bfe_u32 s51, s2, 0x{((xr[1].bit_length())<<16)|xr[0]:x}' if xr else ''}
    s_mov_b32 s49, 0x7fffffff    ; E
    s_mov_b32 s55, 0
    v_mov_b32 v21, s49
    v_mov_b32 v22, {MAIL}
    v_mov_b32 v23, 0
    v_mov_b32 v24, 1
    v_mov_b32 v20, 0
    ds_write_b32 v22, v21
    """)
    for (sh,mk,ls) in (gx or []):
        a(f"""
        s_lshr_b32 s52, s25, {sh}
        s_and_b32 s52, s52, {mk}
        s_lshl_b32 s52, s52, {ls}
        s_xor_b32 s55, s55, s52
        """)
    def tile_off():
        if gx: a("s_xor_b32 s32, s32, s55")
        if len(runs)==1:
            a(f"s_lshl_b32 s32, s32, {runs[0][2]}")
        else:
            for i,(b,ln,ab) in enumerate(runs):
                d = "s52" if i==0 else "s53"
                a(f"s_bfe_u32 {d}, s32, 0x{(ln<<16)|b:x}")
                a(f"s_lshl_b32 {d}, {d}, {ab}")
                if i: a("s_add_u32 s52, s52, s53")
            a("s_mov_b32 s32, s52")
    if early:
        assert not xr
        for i in range(R-1):
            a(f"s_add_u32 s32, s46, {i}")
            tile_off()
            a(f"s_mov_b32 s{56+i}, s32")
        a("s_mov_b32 s18, 0x200000")
        a("s_mov_b32 s19, 0x20000")
        a("s_mov_b32 s22, 0x200000")
        a("s_mov_b32 s23, 0x20000")
    a(f"""
    s_waitcnt lgkmcnt(0)
    {'s_memrealtime s[72:73]' if lprof else ''}
    s_add_u32 s16, s6, s29
    s_addc_u32 s17, s7, 0
    {'' if early else 's_mov_b32 s18, 0x200000'}
    {'' if early else 's_mov_b32 s19, 0x20000'}
    s_add_u32 s20, s8, s29
    s_addc_u32 s21, s9, 0
    {'' if early else 's_mov_b32 s22, 0x200000'}
    {'' if early else 's_mov_b32 s23, 0x20000'}
    s_lshl_b32 s30, s25, {csh}
    s_add_u32 s38, s14, s30
    s_addc_u32 s39, s15, 0
    """)
    def issue(win):
        if not nodma:
            for (srd,lo) in [(16,0),(20,8192)]:
                for h in range(2):
                    a(f"s_add_u32 s33, s31, {lo+h*4096}")
                    a(f"s_mov_b32 m0, s33")
                    lin = all(noff(4*h+n)==noff(4*h)+n*1024 for n in range(4))
                    if lin: a(f"s_add_u32 s35, s32, {noff(4*h)}")
                    for n in range(4):
                        assert noff(4*h+n)-n*1024>=0
                        if not lin: a(f"s_add_u32 s35, s32, {noff(4*h+n)-n*1024}")
                        if win and W: a(f"s_waitcnt vmcnt({W-1})")
                        a(f"buffer_load_dwordx4 v{1+(n&1)}, s[{srd}:{srd+3}], s35 offen offset:{n*1024} {pol if srd==16 else polv} lds")
        a(f"s_add_u32 s31, s31, {SLOT}")
        a(f"s_and_b32 s31, s31, {R*SLOT-1}")
    def half(isv, off, slot, win):
        srd,lo = (20,8192) if isv else (16,0)
        for h in range(2):
            a(f"s_add_u32 s33, {slot}, {lo+h*4096}")
            a(f"s_mov_b32 m0, s33")
            lin = all(noff(4*h+n)==noff(4*h)+n*1024 for n in range(4))
            if lin: a(f"s_add_u32 s35, {off}, {noff(4*h)}")
            for n in range(4):
                assert noff(4*h+n)-n*1024>=0
                if not lin: a(f"s_add_u32 s35, {off}, {noff(4*h+n)-n*1024}")
                if win[0]>=W: a(f"s_waitcnt vmcnt({W-1})")
                win[0]+=1
                a(f"buffer_load_dwordx4 v{1+(n&1)}, s[{srd}:{srd+3}], s35 offen offset:{n*1024} {pol if srd==16 else polv} lds")
    if hs:
        assert kv and early and W<=24 and W>0
        cnt=[0]
        for (isv,i) in ((0,0),(1,0),(0,1),(1,1),(0,2)):
            a(f"s_mov_b32 s31, {i*SLOT}")
            half(isv, f"s{56+i}", "s31", cnt)
        a(f"""
        s_mov_b32 s34, s58
        s_mov_b32 s54, {2*SLOT}
        s_mov_b32 s31, {3*SLOT}
        """)
    for i in range(0 if hs else R-1):
        if early: a(f"s_mov_b32 s32, s{56+i}")
        elif xr:
            a(f"s_xor_b32 s32, s51, {i}")
            a(f"s_add_u32 s32, s32, s46")
        else: a(f"s_add_u32 s32, s46, {i}")
        if not early: tile_off()
        issue(i*16+16>W if W else False)
    a(f"s_mov_b32 s36, 0")
    a.label("L_lloop")
    if hs: a("s_waitcnt lgkmcnt(0)      ; tile i has landed: at most 24 younger loads are in flight")
    else:
      a(f"""
    s_waitcnt vmcnt({(R-2)*16}) lgkmcnt(0)
    s_cmp_eq_u32 s36, s49
    s_cbranch_scc1 L_lend
    """)
    if lprof:
        a(f"""
        s_cmp_eq_u32 s36, {lprof-1}
        s_cbranch_scc0 L_lp
        s_memrealtime s[74:75]
        s_waitcnt lgkmcnt(0)
        """)
        a.label("L_lp")
    a("s_barrier")
    if hs: half(1, "s34", "s54", [W])
    a(f"""
    s_add_u32 s47, s36, {R-1}      ; n
    {'s_xor_b32 s32, s51, s47' if xr else 's_mov_b32 s32, s47'}
    s_add_u32 s32, s46, s32
    s_cmp_lt_u32 s47, {NS}
    s_cbranch_scc1 L_static
    """)
    if dyn:
        a(f"""
        s_and_b32 s48, s47, 3
        v_readlane_b32 s32, v20, s48
        s_nop 3
        s_add_u32 s32, s32, {4*NS}
        """)
    else:
        a(f"s_mov_b32 s32, {NTOT}")
    if kv:
        assert dyn and not nodma
        a(f"""
        s_cmp_lt_u32 s32, {NTOT}
        s_cbranch_scc0 L_lendgame
        """)
    else:
      a(f"""
    s_cmp_lt_u32 s32, {NTOT}
    s_cselect_b32 s18, 0x200000, 0
    s_cselect_b32 s22, 0x200000, 0
    s_cselect_b32 s48, s49, s47
    s_min_u32 s49, s49, s48
    v_mov_b32 v21, s49
    ds_write_b32 v22, v21
    """)
    a.label("L_static")
    tile_off()
    if hs:
        half(0, "s32", "s31", [W])
        a(f"""
        s_mov_b32 s34, s32
        s_mov_b32 s54, s31
        s_add_u32 s31, s31, {SLOT}
        s_and_b32 s31, s31, {R*SLOT-1}
        """)
    else: issue(True)
    a(f"""
    s_cmp_eq_u32 s36, {HSI}
    s_cbranch_scc0 L_nohs1
    global_load_dwordx2 v[26:27], v23, s[12:13] {xp}
    """)
    a.label("L_nohs1")
    a(f"""
    s_cmp_eq_u32 s36, {HSI+R-1}
    s_cbranch_scc0 L_nohs2
    s_mov_b32 s50, {spin}
    """)
    a.label("L_lhs")
    a(f"""
    v_readfirstlane_b32 s48, v26
    s_sub_u32 s50, s50, 1
    s_cmp_eq_u32 s50, 0
    s_cbranch_scc1 L_hsok
    s_cmp_lg_u32 s48, 0
    s_cbranch_scc1 L_hsok
    global_load_dwordx2 v[26:27], v23, s[12:13] {xp}
    s_waitcnt vmcnt(0)
    s_branch L_lhs
    """)
    a.label("L_hsok")
    a("ds_write_b64 v22, v[26:27] offset:8")
    a.label("L_nohs2")
    if dyn:
        assert HSI+R-1 < NS-2*(R-1)
        a(f"""
        s_cmp_lt_u32 s36, {NS-2*(R-1)}
        s_cbranch_scc1 L_noclaim
        s_add_u32 s48, s36, {2*(R-1)}
        s_and_b32 s48, s48, 3
        s_lshl_b64 exec, 1, s48
        global_atomic_add v20, v23, v24, s[38:39] sc0
        s_mov_b64 exec, -1
        """)
        a.label("L_noclaim")
    a(f"""
    s_add_u32 s36, s36, 1
    s_branch L_lloop
    """)
    if kv:
        a.label("L_lendgame")
        a(f"""
        v_mov_b32 v21, s47
        ds_write_b32 v22, v21
        s_waitcnt vmcnt({17 if hs else 18}) lgkmcnt(0)
        s_barrier                      ; tile E-2
        s_waitcnt vmcnt(9)
        s_barrier
        s_waitcnt vmcnt({0 if hs else kvl})
        s_barrier
        """)
    a.label("L_lend")
    a("s_waitcnt vmcnt(0)")
    if lprof:
        a(f"""
        s_lshl_b32 s3, s2, 6
        s_add_u32 s14, s14, s3
        s_addc_u32 s15, s15, 0
        s_add_u32 s14, s14, {TS_OFF}
        s_addc_u32 s15, s15, 0
        v_mov_b32 v32, s72
        v_mov_b32 v33, s73
        v_mov_b32 v34, s74
        v_mov_b32 v35, s75
        v_mov_b32 v8, 0
        global_store_dwordx4 v8, v[32:35], s[14:15] offset:48
        s_waitcnt vmcnt(0)
        """)
    a("s_endpgm")

    a.label("L_comp")
    a(f"""
    v_and_b32 v4, 15, v3
    v_lshrrev_b32 v5, 4, v3       ; g
    s_lshl_b32 s27, s25, 2
    s_add_u32 s27, s27, s24       ; 4p+w
    s_lshl_b32 s28, s27, 12
    v_lshlrev_b32 v6, 8, v4
    v_lshl_add_u32 v7, v5, 4, v6    ; q*256+g*16
    s_waitcnt lgkmcnt(0)
    s_add_u32 s4, s4, s28
    s_addc_u32 s5, s5, 0
    """)
    for s in range(4):
        a(f"global_load_dwordx4 v[{Q0+4*s}:{Q0+4*s+3}], v7, s[4:5] offset:{64*s}")
    a(f"""
    s_or_b32 s30, s2, s24
    s_cmp_lg_u32 s30, 0
    s_cbranch_scc1 L_noclear
    s_memrealtime s[50:51]
    v_mov_b32 v8, 0
    v_mov_b32 v9, 0
    v_mov_b32 v10, 0
    v_mov_b32 v11, 0
    v_lshlrev_b32 v12, {csh}, v3
    global_store_dwordx4 v12, v[8:11], s[14:15] {xp}
    s_waitcnt vmcnt(0) lgkmcnt(0)
    s_or_b32 s50, s50, 1
    v_mov_b32 v14, s50
    v_mov_b32 v15, s51
    s_mov_b64 exec, 1
    global_store_dwordx2 v8, v[14:15], s[12:13] {xp}
    s_mov_b64 exec, -1
    """)
    a.label("L_noclear")
    a(f"""
    s_lshl_b32 s28, s27, 15        ; (4p+w)*32KiB
    s_add_u32 s40, s14, s28
    s_addc_u32 s41, s15, 0
    s_add_u32 s40, s40, {XB_OFF}
    s_addc_u32 s41, s41, 0
    s_lshl_b32 s28, s27, 12
    s_add_u32 s10, s10, s28
    s_addc_u32 s11, s11, 0
    v_lshlrev_b32 v7, 4, v3        ; lane*16
    v_lshlrev_b32 v6, 8, v4        ; q*256
    v_lshl_add_u32 v6, v5, 3, v6   ; + g*8
    s_lshl_b32 s28, s26, 6         ; 2j*32
    v_add_u32 v{OADR}, s28, v6
    s_lshl_b32 s28, s26, 8
    s_add_u32 s28, s28, {XB_ML}
    v_lshl_add_u32 v{MLO}, v4, 4, s28
    s_lshl_b32 s28, s26, 7
    s_add_u32 s28, s28, {XB_FL}
    v_mov_b32 v{FLO}, s28
    v_and_b32 v8, 3, v3
    v_lshlrev_b32 v8, 7, v8
    v_add_u32 v{FLP}, {XB_FL}, v8
    """)
    if chk:
        a(f"""
        v_and_b32 v8, 3, v3
        s_add_u32 s28, s26, 1
        v_add_u32 v8, s28, v8
        v_and_b32 v8, 3, v8
        v_lshrrev_b32 v9, 2, v3
        v_lshlrev_b32 v9, 3, v9        ; quad * 8
        s_lshl_b32 s28, s26, 7
        s_add_u32 s28, s28, {XB_CK}
        v_lshl_add_u32 v10, v8, 9, v9
        v_add_u32 v{FLO}, s28, v10
        s_lshl_b32 s28, s26, 9
        s_add_u32 s28, s28, {XB_CK}
        v_lshl_add_u32 v10, v8, 7, v9
        v_add_u32 v{FLP}, s28, v10
        s_mov_b32 s84, 0x11111111
        s_mov_b32 s85, 0x11111111
        s_mov_b32 s86, 0x22222222
        s_mov_b32 s87, 0x22222222
        s_mov_b32 s88, 0x77777777
        s_mov_b32 s89, 0x77777777
        """)
        for i,c in enumerate(CKC): a(f"s_mov_b32 s{76+i}, 0x{c:x}")
        a("s_mov_b32 s90, 4096          ; bound on the reload loop")
    for u in range(1,4):
        a(f"""
        s_add_u32 s28, s26, {u}
        s_and_b32 s28, s28, 3
        s_lshl_b32 s29, s28, 2
        s_add_u32 s29, s29, s26
        s_lshl_b32 s29, s29, 10
        v_add_u32 v{XAO+u-1}, s29, v7
        s_lshl_b32 s29, s26, 2
        s_add_u32 s29, s29, s28
        s_lshl_b32 s29, s29, 10
        v_add_u32 v{XAI+u-1}, s29, v7
        s_lshl_b32 s29, s28, 8
        s_add_u32 s29, s29, {XB_ML}
        v_lshl_add_u32 v{MLI+u-1}, v4, 4, s29
        """)
    a(f"""
    v_and_b32 v7, 7, v4
    v_lshlrev_b32 v7, 1, v7
    v_xor_b32 v7, v7, v5
    v_lshlrev_b32 v7, 4, v7
    v_lshl_add_u32 v{KA}, v4, 8, v7
    """)
    for s in range(1,4):
        a(f"v_xor_b32 v{KA+s}, {s<<6}, v{KA}")
    a(f"""
    v_lshrrev_b32 v7, 2, v4        ; r
    v_lshl_add_u32 v7, v5, 2, v7   ; key=4g+r
    v_and_b32 v14, 7, v7           ; k7
    v_and_b32 v15, 3, v3           ; c
    v_lshlrev_b32 v15, 3, v15      ; c*8
    v_lshl_add_u32 v15, v7, 8, v15 ; key*256 + c*8
    v_lshl_add_u32 v15, v14, 5, v15 ; + k7<<5      (db=0)
    s_lshl_b32 s30, s26, 1
    """)
    for t in range(8):
        a(f"s_add_u32 s34, s30, {t}")
        a(f"s_and_b32 s34, s34, 7")
        a(f"s_lshl_b32 s34, s34, 5")
        a(f"v_xor_b32 v{VB+t}, s34, v15")
    for i in range(32): a(f"v_mov_b32 v{O0+i}, 0")
    for i in range(4): a(f"v_mov_b32 v{L0+i}, 0")
    for i in range(4): a(f"v_mov_b32 v{ONE+i}, 0x3f803f80")
    for i in range(32): a(f"v_mov_b32 v{VA+32+i}, 0")
    for i in range(8): a(f"v_mov_b32 v{SS+8+i}, 0xff800000")
    a(f"""
    v_mov_b32 v{VM}, 0xff61b1e6
    v_mov_b32 v{VMC}, 0xff61b1e6
    v_mov_b32 v{VTH}, 0xff61b1e6
    v_mov_b32 v{VMAILA}, {MAIL}
    s_mov_b32 s37, 0x{C_SCALE:x}
    s_mov_b32 s44, 0x{fbits(THR/CF):x}
    s_mov_b32 s36, {1 if kv else 0}
    s_lshl_b32 s45, 1, s26
    s_waitcnt vmcnt(0)
    """)
    if cyc: stamp(6); a("s_waitcnt lgkmcnt(0)")

    def check(sb, lbl):
        S=SS+8*sb
        a(f"""
        v_max3_f32 v{T0}, v{S}, v{S+1}, v{S+2}
        v_max3_f32 v{T1}, v{S+3}, v{S+4}, v{S+5}
        v_max3_f32 v{T0}, v{T0}, v{S+6}, v{S+7}
        v_max_f32 v{T0}, v{T0}, v{T1}
        v_cmp_gt_f32 vcc, v{T0}, v{VTH}
        s_cbranch_vccnz L_rare{lbl}
        """)
        a.label(f"L_ret{lbl}")
    def softmax_B(sb):
        S=SS+8*sb
        for i in range(8): a(f"v_fma_f32 v{S+i}, v{S+i}, s37, -v{VMC}")
        for i in range(8): a(f"v_exp_f32 v{S+i}, v{S+i}")
        for i in range(4): a(f"v_cvt_pk_bf16_f32 v{P0+i}, v{S+2*i}, v{S+2*i+1}")
    def pv(vb, t):
        V=VA+32*vb
        a(f"v_mfma_f32_16x16x32_bf16 v[{O0+4*t}:{O0+4*t+3}], v[{V+4*t}:{V+4*t+3}], v[{P0}:{P0+3}], v[{O0+4*t}:{O0+4*t+3}]")
    def lsum():
        a(f"v_mfma_f32_16x16x32_bf16 v[{L0}:{L0+3}], v[{ONE}:{ONE+3}], v[{P0}:{P0+3}], v[{L0}:{L0+3}]")
    def rare(lbl):
        a.label(f"L_rare{lbl}")
        a(f"""
        v_max_f32 v{T0}, v{T0}, v{VM}
        v_mov_b32 v{T1}, v{T0}
        s_nop 1
        v_permlane16_swap_b32 v{T0}, v{T1}
        v_max_f32 v{T0}, v{T0}, v{T1}
        v_mov_b32 v{T1}, v{T0}
        s_nop 1
        v_permlane32_swap_b32 v{T0}, v{T1}
        v_max_f32 v{VM}, v{T0}, v{T1}
        v_mul_f32 v{T2}, s37, v{VM}
        v_add_f32 v{VTH}, s44, v{VM}
        v_sub_f32 v{T3}, v{VMC}, v{T2}
        v_exp_f32 v{T3}, v{T3}
        v_mov_b32 v{VMC}, v{T2}
        s_nop 0
        """)
        for i in range(4): a(f"v_mul_f32 v{L0+i}, v{T3}, v{L0+i}")
        for i in range(32): a(f"v_mul_f32 v{O0+i}, v{T3}, v{O0+i}")
        a(f"s_branch L_ret{lbl}")

    a.label("L_cloop")
    for r in range(R):
        cur=r&1; prev=cur^1
        base=r*SLOT
        S=SS+8*cur
        V=VA+32*cur
        a("s_barrier")
        if prof and r==0:
            for (it,sl) in ((4,3),(24,6),(44,7)):
                a(f"s_cmp_eq_u32 s36, {it}")
                a(f"s_cbranch_scc0 L_pr{sl}")
                a(f"s_memrealtime s[{60+2*sl}:{61+2*sl}]")
                a("s_waitcnt lgkmcnt(0)")
                a.label(f"L_pr{sl}")
        if r==0 and touch and not noepi:
            a(f"s_cmp_eq_u32 s36, {touch}")
            a("s_cbranch_scc1 L_touch")
            a.label("L_touchret")
        a(f"ds_read_b32 v{VMAIL}, v{VMAILA}")
        if not nocomp:
            for kb in range(2):
                for s in range(4):
                    a(f"ds_read_b128 v[{K0+16*kb+4*s}:{K0+16*kb+4*s+3}], v{KA+s} offset:{base+kb*4096}")
            check(prev, r)
            softmax_B(prev)
            def vread(t,hb):
                a(f"ds_read_b64_tr_b16 v[{V+4*t+2*hb}:{V+4*t+2*hb+1}], v{VB+t} offset:{base+8192+hb*4096}")
            def qk(kb,s):
                c = "0" if s==0 else f"v[{S+4*kb}:{S+4*kb+3}]"
                a(f"v_mfma_f32_16x16x32_bf16 v[{S+4*kb}:{S+4*kb+3}], v[{K0+16*kb+4*s}:{K0+16*kb+4*s+3}], v[{Q0+4*s}:{Q0+4*s+3}], {c}")
            vread(0,0); vread(0,1)
            lsum()
            vread(1,0); vread(1,1)
            pv(prev,0)
            vread(2,0); vread(2,1)
            pv(prev,1)
            a("s_waitcnt lgkmcnt(6)")
            for t in range(2,6):
                pv(prev,t); vread(t+1,0); vread(t+1,1)
            pv(prev,6)
            vread(7,0)
            pv(prev,7)
            a("s_waitcnt lgkmcnt(14)")
            vread(7,1)
            for s in range(4): qk(0,s); qk(1,s)
        a(f"s_add_u32 s36, s36, 1")
        a(f"s_waitcnt lgkmcnt(0)")
        a(f"v_cmp_eq_u32 vcc, s36, v{VMAIL}")
        a(f"s_cbranch_vccnz L_last{(r+1)%R}" if kv else f"s_cbranch_vccnz L_drain{cur}")
    a("s_branch L_cloop")
    if kv:
        assert not nocomp and not prof and not touch
        for r in range(R):
            cur=r&1; prev=cur^1; base=r*SLOT; S=SS+8*cur; V=VA+32*cur
            def vread(t,hb):
                a(f"ds_read_b64_tr_b16 v[{V+4*t+2*hb}:{V+4*t+2*hb+1}], v{VB+t} offset:{base+8192+hb*4096}")
            def qk(kb,s_):
                c = "0" if s_==0 else f"v[{S+4*kb}:{S+4*kb+3}]"
                a(f"v_mfma_f32_16x16x32_bf16 v[{S+4*kb}:{S+4*kb+3}], v[{K0+16*kb+4*s_}:{K0+16*kb+4*s_+3}], v[{Q0+4*s_}:{Q0+4*s_+3}], {c}")
            a.label(f"L_last{r}")
            if kvprof==1: a("s_memrealtime s[72:73]")
            a("s_barrier")
            if kvprof==1: a("s_memrealtime s[74:75]")
            for kb in range(2):
                for s_ in range(4):
                    a(f"ds_read_b128 v[{K0+16*kb+4*s_}:{K0+16*kb+4*s_+3}], v{KA+s_} offset:{base+kb*4096}")
            a(f"ds_read_b64 v[{VMAIL}:{VMAIL+1}], v{VMAILA} offset:8")
            check(prev, f"p{r}")
            softmax_B(prev)
            a("s_nop 1")
            lsum()
            for t in range(4): pv(prev,t)
            a("s_waitcnt lgkmcnt(0)")
            for s_ in range(4): qk(0,s_); qk(1,s_)
            for t in range(4,8): pv(prev,t)
            a("s_nop 3")
            check(cur, f"c{r}")
            softmax_B(cur)
            if kvprof==2: a("s_memrealtime s[72:73]")
            a("s_barrier")
            if kvprof==2: a("s_memrealtime s[74:75]")
            if kvprof==2: a("s_waitcnt lgkmcnt(0)")
            for t in range(2,8): vread(t,0); vread(t,1)
            lsum()
            a("s_waitcnt lgkmcnt(10)"); pv(cur,2); vread(0,0); vread(0,1)
            a("s_waitcnt lgkmcnt(10)"); pv(cur,3); vread(1,0); vread(1,1)
            for (t,n) in ((4,10),(5,8),(6,6),(7,4),(0,2),(1,0)):
                a(f"s_waitcnt lgkmcnt({n})"); pv(cur,t)
            a("s_branch L_epi")
    if touch and not noepi:
        assert touch%R==0
        a.label("L_touch")
        if tmode==0:
            a(f"""
            s_mov_b64 exec, 1
            global_load_dword v{DUM}, v{FLO}, s[40:41]
            global_load_dword v{DUM}, v{OADR}, s[10:11]
            s_mov_b64 exec, -1
            s_branch L_touchret
            """)
        else:
            a(f"""
            s_mov_b64 exec, 15
            global_load_dword v{DUM}, v{FLP}, s[40:41] {tpol}
            s_mov_b64 exec, -1
            s_branch L_touchret
            """)
    for par in range(0 if kv else 2):
        a.label(f"L_drain{par}")
        a(f"ds_read_b64 v[{VMAIL}:{VMAIL+1}], v{VMAILA} offset:8")
        if not nocomp:
            a("s_nop 7")
            check(par, f"d{par}")
            softmax_B(par)
            a("s_nop 1")
            lsum()
            for t in (2,3,4,5,6,7,0,1): pv(par,t)
        a("s_branch L_epi")
    if not nocomp:
        for r in range(R): rare(r)
        if kv:
            for r in range(R): rare(f"p{r}"); rare(f"c{r}")
        else:
            rare("d0"); rare("d1")
    a.label("L_epi")
    stamp(1)
    if cyc: stamp(7)
    if not noepi:
        o=O0+8
        pregs=[76,78,80,82]
        def pcmp(rg):
            if chk: return f"v_cmp_eq_u32 vcc, v{rg+1}, v{VMAIL}"
            return f"v_cmp_eq_u64 vcc, v[{rg}:{rg+1}], v[{VMAIL}:{VMAIL+1}]"
        def pollins(rg):
            if pollop=='load': return f"global_load_dwordx2 v[{rg}:{rg+1}], v{FLP}, s[40:41] {xp}"
            return f"global_atomic_add_x2 v[{rg}:{rg+1}], v{FLP}, v[84:85], s[40:41] {pollop}"
        if pollop!='load':
            a("v_mov_b32 v84, 0")
            a("v_mov_b32 v85, 0")
        a("s_nop 4")
        a(f"v_max3_f32 v{T0}, |v{o}|, |v{o+1}|, |v{o+2}|")
        a(f"v_max3_f32 v{T1}, |v{o+3}|, |v{o+4}|, |v{o+5}|")
        k=6; t=0
        while k<24:
            tr=(T0,T1)[t&1]
            a(f"v_max3_f32 v{tr}, v{tr}, |v{o+k}|, |v{o+k+1}|")
            k+=2; t+=1
        a(f"""
        v_max_f32 v{T0}, v{T0}, v{T1}
        v_mov_b32 v{GM}, v{VMC}
        v_mov_b32 v{T1}, v{T0}
        v_mov_b32 v{GM+1}, v{L0}
        s_nop 0
        v_permlane16_swap_b32 v{T0}, v{T1}
        v_max_f32 v{T0}, v{T0}, v{T1}
        v_mov_b32 v{T1}, v{T0}
        v_mov_b32 v{GM+3}, 0
        s_nop 0
        v_permlane32_swap_b32 v{T0}, v{T1}
        v_max_f32 v{T0}, v{T0}, v{T1}
        v_frexp_exp_i32_f32 v{T1}, v{T0}
        v_sub_u32 v{T1}, 15, v{T1}
        v_min_i32 v{GM+2}, 0x7e, v{T1}
        v_ldexp_f32 v12, 1.0, v{GM+2}
        """)
        CS=60; CU=[61,62,63]
        def dpp2():
            for (qp,pre) in (("[1,0,3,2]",True),("[2,3,0,1]",False)):
                a(f"v_add_u32_dpp v{CU[0]}, v{CU[0]}, v{CU[0]} quad_perm:{qp} row_mask:0xf bank_mask:0xf")
                a(f"v_add_u32_dpp v{CU[1]}, v{CU[1]}, v{CU[1]} quad_perm:{qp} row_mask:0xf bank_mask:0xf")
                if pre: a("s_nop 0")
                a(f"v_add_u32_dpp v{CU[2]}, v{CU[2]}, v{CU[2]} quad_perm:{qp} row_mask:0xf bank_mask:0xf")
        if chk:
            a(f"""
            s_mov_b64 exec, 0xffff
            global_store_dwordx4 v{MLO}, v[{GM}:{GM+3}], s[40:41] {xst}
            s_mov_b64 exec, -1
            s_waitcnt lgkmcnt(0)
            v_dot2_u32_u16 v{CS}, v{GM}, s80, v{VMAIL+1}
            v_dot2_u32_u16 v{CS}, v{GM+1}, s81, v{CS}
            v_dot2_u32_u16 v{CS}, v{GM+2}, s82, v{CS}
            """)
        for u in range(1,4):
            ob=O0+8*u; g=G0+4*(u-1)
            for i in range(4):
                a(f"v_pk_mul_f32 v[{ob+2*i}:{ob+2*i+1}], v[{ob+2*i}:{ob+2*i+1}], v[12:13] op_sel_hi:[1,0]")
            for i in range(4):
                a(f"v_cvt_pk_f16_f32 v{g+i}, v{ob+2*i}, v{ob+2*i+1}")
            if chk!=2: a(f"global_store_dwordx4 v{XAO+u-1}, v[{g}:{g+3}], s[40:41] {xst}")
            if chk:
                for i in range(4):
                    a(f"v_dot2_u32_u16 v{CU[u-1]}, v{g+i}, s{76+i}, v{CS if i==0 else CU[u-1]}")
        if chk:
            dpp2()
            a(f"""
            v_cndmask_b32 v14, v{CU[2]}, v{CU[1]}, s[86:87]
            v_mov_b32 v15, v{VMAIL}
            v_cndmask_b32 v14, v14, v{CU[0]}, s[84:85]
            s_mov_b64 exec, s[88:89]
            global_store_dwordx2 v{FLO}, v[14:15], s[40:41] {xst}
            """)
            if chk==2:
                a("s_mov_b64 exec, -1")
                for u in range(1,4):
                    g=G0+4*(u-1)
                    a(f"global_store_dwordx4 v{XAO+u-1}, v[{g}:{g+3}], s[40:41] {xst}")
        else:
          a(f"""
        s_mov_b64 exec, 0xffff
        global_store_dwordx4 v{MLO}, v[{GM}:{GM+3}], s[40:41] {xst}
        s_mov_b64 exec, 1
        s_waitcnt vmcnt(0) lgkmcnt(0)
        {f"global_store_dwordx2 v{FLO}, v[{VMAIL}:{VMAIL+1}], s[40:41] {xst}" if flop=='store' else f"global_atomic_swap_x2 v{FLO}, v[{VMAIL}:{VMAIL+1}], s[40:41] {flop}"}
        """)
        stamp(2)
        a(f"""
        {'s_mov_b32 s46, 7' if chk else 's_andn2_b32 s46, 15, s45'}
        s_mov_b32 s47, 0
        s_mov_b64 exec, s[46:47]
        s_mov_b32 s36, {spin}
        """)
        if npoll==1:
            a("s_branch L_poll0")
            a.label("L_poll")
            if psleep: a(f"s_sleep {psleep}")
            a.label("L_poll0")
            a(f"""
            {pollins(pregs[0])}
            s_sub_u32 s36, s36, 1
            s_cmp_eq_u32 s36, 0
            s_cbranch_scc1 L_poll_ok
            s_waitcnt vmcnt(0)
            {pcmp(pregs[0])}
            s_cmp_eq_u32 vcc_lo, s46
            s_cbranch_scc0 L_poll
            """)
        else:
            regs=pregs[:npoll]
            for i,rg in enumerate(regs):
                a(pollins(rg))
                if i<npoll-1: a(f"s_sleep {psleep}")
            a.label("L_poll")
            for i,rg in enumerate(regs):
                a(f"""
                s_waitcnt vmcnt({npoll-1})
                {pcmp(rg)}
                s_cmp_eq_u32 vcc_lo, s46
                s_cbranch_scc1 L_poll_ok
                {pollins(rg)}
                """)
            a(f"""
            s_sub_u32 s36, s36, 1
            s_cmp_eq_u32 s36, 0
            s_cbranch_scc0 L_poll
            """)
        a.label("L_poll_ok")
        a("s_mov_b64 exec, -1")
        stamp(3)
        if pwait: a("s_waitcnt vmcnt(0)")
        AC=88
        if chk: a.label("L_reload")
        for u in range(1,4):
            a(f"global_load_dwordx4 v[{XML+4*(u-1)}:{XML+4*(u-1)+3}], v{MLI+u-1}, s[40:41] {xp}")
        for u in range(1,4):
            a(f"global_load_dwordx4 v[{X0+4*(u-1)}:{X0+4*(u-1)+3}], v{XAI+u-1}, s[40:41] {xp}")
        nl=3
        if chk:
            a(f"""
            s_mov_b64 exec, s[88:89]
            global_load_dwordx2 v[86:87], v{FLP}, s[40:41] {xp}
            s_mov_b64 exec, -1
            """)
            nl=4
        a(f"s_waitcnt vmcnt({nl})")
        m=[VMC, XML, XML+4, XML+8]
        l=[L0, XML+1, XML+5, XML+9]
        kk=[None, XML+2, XML+6, XML+10]
        if chk:
            for u in range(1,4):
                a(f"v_dot2_u32_u16 v{CU[u-1]}, v{m[u]}, s80, v{VMAIL+1}")
            for u in range(1,4):
                a(f"v_dot2_u32_u16 v{CU[u-1]}, v{l[u]}, s81, v{CU[u-1]}")
            for u in range(1,4):
                a(f"v_dot2_u32_u16 v{CU[u-1]}, v{kk[u]}, s82, v{CU[u-1]}")
        a(f"""
        v_max3_f32 v{T0}, v{m[0]}, v{m[1]}, v{m[2]}
        v_max_f32 v{T0}, v{T0}, v{m[3]}
        v_sub_f32 v12, v{m[0]}, v{T0}
        v_sub_f32 v13, v{m[1]}, v{T0}
        v_sub_f32 v14, v{m[2]}, v{T0}
        v_sub_f32 v15, v{m[3]}, v{T0}
        v_exp_f32 v12, v12
        v_exp_f32 v13, v13
        v_exp_f32 v14, v14
        v_exp_f32 v15, v15
        v_sub_u32 v{kk[1]}, 0, v{kk[1]}
        v_sub_u32 v{kk[2]}, 0, v{kk[2]}
        v_sub_u32 v{kk[3]}, 0, v{kk[3]}
        v_mul_f32 v{T1}, v{l[0]}, v12
        v_fmac_f32 v{T1}, v{l[1]}, v13
        v_fmac_f32 v{T1}, v{l[2]}, v14
        v_fmac_f32 v{T1}, v{l[3]}, v15
        v_rcp_f32 v{T3}, v{T1}
        v_ldexp_f32 v13, v13, v{kk[1]}
        v_ldexp_f32 v14, v14, v{kk[2]}
        v_ldexp_f32 v15, v15, v{kk[3]}
        """)
        for i in range(8):
            a(f"v_mul_f32 v{AC+i}, v{O0+i}, v12")
        a(f"""
        v_fma_f32 v{T2}, -v{T1}, v{T3}, 1.0
        v_fmac_f32 v{T3}, v{T3}, v{T2}
        """)
        a("s_waitcnt vmcnt(0)")
        stamp(4)
        def mix(u):
            for i in range(8):
                a(f"v_fma_mix_f32 v{AC+i}, v{X0+4*(u-1)+i//2}, v{12+u}, v{AC+i} op_sel:[{i&1},0,0] op_sel_hi:[1,0,0]")
        if chk:
            for i in range(4):
                for u in range(1,4):
                    a(f"v_dot2_u32_u16 v{CU[u-1]}, v{X0+4*(u-1)+i}, s{76+i}, v{CU[u-1]}")
            mix(1)
            for u in range(3): a(f"v_add_u32_dpp v{CU[u]}, v{CU[u]}, v{CU[u]} quad_perm:[1,0,3,2] row_mask:0xf bank_mask:0xf")
            mix(2)
            for u in range(3): a(f"v_add_u32_dpp v{CU[u]}, v{CU[u]}, v{CU[u]} quad_perm:[2,3,0,1] row_mask:0xf bank_mask:0xf")
            mix(3)
            a(f"""
            v_cndmask_b32 v{T0}, v{CU[2]}, v{CU[1]}, s[86:87]
            v_cndmask_b32 v{T0}, v{T0}, v{CU[0]}, s[84:85]
            v_cmp_ne_u32 vcc, v{T0}, v86
            s_and_b64 vcc, vcc, s[88:89]
            s_cbranch_scc0 L_verified
            s_sub_u32 s90, s90, 1
            s_cmp_eq_u32 s90, 0
            s_cbranch_scc0 L_reload
            """)
            a.label("L_verified")
        else:
            for u in range(1,4): mix(u)
        for i in range(8):
            a(f"v_mul_f32 v{O0+i}, v{AC+i}, v{T3}")
        a(f"""
        v_cvt_pk_bf16_f32 v12, v{O0}, v{O0+1}
        v_cvt_pk_bf16_f32 v13, v{O0+2}, v{O0+3}
        v_cvt_pk_bf16_f32 v14, v{O0+4}, v{O0+5}
        v_cvt_pk_bf16_f32 v15, v{O0+6}, v{O0+7}
        global_store_dwordx2 v{OADR}, v[12:13], s[10:11] {opol}
        global_store_dwordx2 v{OADR}, v[14:15], s[10:11] offset:32 {opol}
        """)
    if ts:
        a("s_waitcnt vmcnt(0)")
        a("v_mov_b32 v8, 0")
        stamp(5)
        a(f"""
        s_waitcnt lgkmcnt(0)
        s_cmp_lg_u32 s24, 0
        s_cbranch_scc1 L_done
        s_lshl_b32 s3, s2, 6
        s_add_u32 s14, s14, s3
        s_addc_u32 s15, s15, 0
        s_add_u32 s14, s14, {TS_OFF}
        s_addc_u32 s15, s15, 0
        """)
        if cyc:
            a("s_sub_u32 s72, s74, s72")
            a("s_mov_b32 s73, 0")
        elif not prof and not kvprof:
            a("s_mov_b32 s72, s90" if chk else "s_mov_b32 s72, s36")
            a("s_mov_b32 s73, 0")
        if not prof and not kvprof:
            a("s_mov_b32 s74, 0")
            a("s_mov_b32 s75, 0")
        for i in range(0,6 if lprof else 8,2):
            a(f"""
            v_mov_b32 v{32+2*i}, s{60+2*i}
            v_mov_b32 v{33+2*i}, s{61+2*i}
            v_mov_b32 v{34+2*i}, s{62+2*i}
            v_mov_b32 v{35+2*i}, s{63+2*i}
            global_store_dwordx4 v8, v[{32+2*i}:{35+2*i}], s[14:15] offset:{8*i}
            """)
    a.label("L_done")
    a("s_endpgm")
    txt=HDR+f"; @launch grid=(256,1,1) block=(320,1,1) lds={lds}\n"+'.amdgcn_target "amdgcn-amd-amdhsa--gfx950"\n.text\n'+kernel_head(NAME)+a.text()+'.section .rodata,"a"\n.p2align 6\n'+kernel_desc(NAME,nv or NVGPR)
    return txt

if __name__=='__main__':
    import ast
    out=sys.argv[1]
    kw={}
    for x in sys.argv[2:]:
        k,v=x.split('=')
        try: v=ast.literal_eval(v)
        except Exception: pass
        kw[k]=v
    open(out,'w').write(gen(**kw))
```

```python
import sys, struct
from asmlib import *

NAME='standalone__gqa_softmax__sampling_kernel'
def fbits(x): return struct.unpack('<I',struct.pack('<f',x))[0]
CF = 0.08838834764831845*1.4426950408889634
C_SCALE = fbits(CF)

Q0=16
K0=32
VA=64
SS=128
P0=144
O0=148
L0=180
ONE=184
KA=188
VB=192
VM=200; VMC=201; VTH=202
T0=203; T1=204; T2=205; T3=206
VMAILA=207; VMAIL=208
XAO=210
XAI=213
OADR=216
MLO=217
MLI=218
FLO=221
FLP=222
DUM=223
NVGPR=224
X0=32
G0=44
GM=56
XML=64

XB_OFF=1<<20
XB_ML=16384
XB_FL=16384+1024
XB_CK=16384+2048
CKC=[0x9e3579b1,0x85eb4a6b,0xc2b3ae35,0x27d52f2f,0x165767b1,0xd3a3646d,0xfd71c5a7]
TS_OFF=480<<20
R=4
SLOT=16384
MAIL=R*SLOT

def gen(W=24, pol='nt', polv=None, mapping=1, ts=False, spin=1<<16, cyc=False, THR=8.0, lprio=0,
        nodma=False, nocomp=False, NS=48, dyn=True, psleep=1, HSI=None, noepi=False, opol='', csh=10,
        touch=8, pre=False, hs=False, kv=False, kvl=1, kvprof=0, lw0=False, early=False, chk=False, pwait=None, pollop='load', flop='store', tmode=0, tpol='sc1', xp='sc1', xst='sc1', prof=False, lprof=0, nv=None, npoll=1, xr=None, gx=None, pat='r0 r1 t0 t1 n0 n1 n2 t2 t3 t4 t5 t6 t7'):
    if polv is None: polv=pol
    toks=pat.split(); assert sorted(toks)==sorted(['r0','r1','n0','n1','n2']+[f't{i}' for i in range(8)])
    pos={x:8+i for i,x in enumerate(toks)}
    def noff(n): return sum(((n>>b)&1)<<pos[f'n{b}'] for b in range(3))
    runs=[]
    for b in range(8):
        if runs and runs[-1][0]+runs[-1][1]==b and runs[-1][2]+runs[-1][1]==pos[f't{b}']:
            runs[-1]=(runs[-1][0],runs[-1][1]+1,runs[-1][2])
        else: runs.append((b,1,pos[f't{b}']))
    a=A()
    lds=MAIL+16384+128
    NTOT=256
    if not dyn: NS=64
    if HSI is None: HSI=NS-12
    if xr: assert NS%(xr[1]+1)==0
    def stamp(i):
        if ts:
            a(f"{'s_memtime' if (cyc and i in (6,7)) else 's_memrealtime'} s[{60+2*i}:{61+2*i}]")
    a(f"""
    s_cmp_ge_u32 s2, 256
    s_cbranch_scc1 L_done
    s_load_dwordx4 s[4:7], s[0:1], 0
    s_load_dwordx4 s[8:11], s[0:1], 16
    s_load_dwordx4 s[12:15], s[0:1], 32
    """)
    stamp(0)
    a("""
    v_lshrrev_b32 v2, 6, v0
    v_and_b32 v3, 63, v0
    v_readfirstlane_b32 s24, v2
    """)
    if mapping==0:
        a("""
        s_lshr_b32 s25, s2, 5
        s_lshl_b32 s25, s25, 3
        s_and_b32 s26, s2, 7
        s_or_b32 s25, s25, s26
        s_lshr_b32 s26, s2, 3
        s_and_b32 s26, s26, 3
        """)
    elif mapping==1:
        a("""
        s_lshr_b32 s25, s2, 2
        s_and_b32 s26, s2, 3
        """)
    elif mapping==2:
        a("""
        s_and_b32 s26, s2, 7
        s_lshr_b32 s27, s26, 1
        s_xor_b32 s26, s26, s27
        s_and_b32 s26, s26, 1
        s_lshr_b32 s25, s2, 3
        s_lshl_b32 s25, s25, 1
        s_or_b32 s25, s25, s26
        s_mov_b32 s26, s27
        """)
    elif mapping==3:
        a("""
        s_and_b32 s26, s2, 1
        s_lshr_b32 s25, s2, 3
        s_lshl_b32 s25, s25, 1
        s_or_b32 s25, s25, s26
        s_lshr_b32 s26, s2, 1
        s_and_b32 s26, s26, 3
        """)
    if lw0:
        a("""
        s_cmp_lg_u32 s24, 0
        s_cbranch_scc0 L_load
        s_sub_u32 s24, s24, 1
        s_branch L_comp
        """)
        a.label("L_load")
    else:
        a(f"""
        s_cmp_lt_u32 s24, 4
        s_cbranch_scc1 L_comp
        """)
    if lprio: a(f"s_setprio {lprio}")
    a(f"""
    s_lshl_b32 s29, s25, 21
    v_lshrrev_b32 v4, 4, v3      ; rr
    v_and_b32 v5, 15, v3         ; c'
    v_lshlrev_b32 v6, 1, v4      ; f = rr<<1
    v_xor_b32 v5, v5, v6
    v_lshlrev_b32 v5, 4, v5
    v_and_b32 v6, 1, v4
    v_lshl_add_u32 v5, v6, {pos['r0']}, v5
    v_lshrrev_b32 v6, 1, v4
    v_lshl_add_u32 v1, v6, {pos['r1']}, v5
    v_xor_b32 v2, 0x80, v1
    s_mov_b32 s31, 0
    s_mul_i32 s46, s26, {NS}
    {f's_bfe_u32 s51, s2, 0x{((xr[1].bit_length())<<16)|xr[0]:x}' if xr else ''}
    s_mov_b32 s49, 0x7fffffff    ; E
    s_mov_b32 s55, 0
    v_mov_b32 v21, s49
    v_mov_b32 v22, {MAIL}
    v_mov_b32 v23, 0
    v_mov_b32 v24, 1
    v_mov_b32 v20, 0
    ds_write_b32 v22, v21
    """)
    for (sh,mk,ls) in (gx or []):
        a(f"""
        s_lshr_b32 s52, s25, {sh}
        s_and_b32 s52, s52, {mk}
        s_lshl_b32 s52, s52, {ls}
        s_xor_b32 s55, s55, s52
        """)
    def tile_off():
        if gx: a("s_xor_b32 s32, s32, s55")
        if len(runs)==1:
            a(f"s_lshl_b32 s32, s32, {runs[0][2]}")
        else:
            for i,(b,ln,ab) in enumerate(runs):
                d = "s52" if i==0 else "s53"
                a(f"s_bfe_u32 {d}, s32, 0x{(ln<<16)|b:x}")
                a(f"s_lshl_b32 {d}, {d}, {ab}")
                if i: a("s_add_u32 s52, s52, s53")
            a("s_mov_b32 s32, s52")
    if early:
        assert not xr
        for i in range(R-1):
            a(f"s_add_u32 s32, s46, {i}")
            tile_off()
            a(f"s_mov_b32 s{56+i}, s32")
        a("s_mov_b32 s18, 0x200000")
        a("s_mov_b32 s19, 0x20000")
        a("s_mov_b32 s22, 0x200000")
        a("s_mov_b32 s23, 0x20000")
    a(f"""
    s_waitcnt lgkmcnt(0)
    {'s_memrealtime s[72:73]' if lprof else ''}
    s_add_u32 s16, s6, s29
    s_addc_u32 s17, s7, 0
    {'' if early else 's_mov_b32 s18, 0x200000'}
    {'' if early else 's_mov_b32 s19, 0x20000'}
    s_add_u32 s20, s8, s29
    s_addc_u32 s21, s9, 0
    {'' if early else 's_mov_b32 s22, 0x200000'}
    {'' if early else 's_mov_b32 s23, 0x20000'}
    s_lshl_b32 s30, s25, {csh}
    s_add_u32 s38, s14, s30
    s_addc_u32 s39, s15, 0
    """)
    def issue(win):
        if not nodma:
            for (srd,lo) in [(16,0),(20,8192)]:
                for h in range(2):
                    a(f"s_add_u32 s33, s31, {lo+h*4096}")
                    a(f"s_mov_b32 m0, s33")
                    lin = all(noff(4*h+n)==noff(4*h)+n*1024 for n in range(4))
                    if lin: a(f"s_add_u32 s35, s32, {noff(4*h)}")
                    for n in range(4):
                        assert noff(4*h+n)-n*1024>=0
                        if not lin: a(f"s_add_u32 s35, s32, {noff(4*h+n)-n*1024}")
                        if win and W: a(f"s_waitcnt vmcnt({W-1})")
                        a(f"buffer_load_dwordx4 v{1+(n&1)}, s[{srd}:{srd+3}], s35 offen offset:{n*1024} {pol if srd==16 else polv} lds")
        a(f"s_add_u32 s31, s31, {SLOT}")
        a(f"s_and_b32 s31, s31, {R*SLOT-1}")
    def half(isv, off, slot, win):
        srd,lo = (20,8192) if isv else (16,0)
        for h in range(2):
            a(f"s_add_u32 s33, {slot}, {lo+h*4096}")
            a(f"s_mov_b32 m0, s33")
            lin = all(noff(4*h+n)==noff(4*h)+n*1024 for n in range(4))
            if lin: a(f"s_add_u32 s35, {off}, {noff(4*h)}")
            for n in range(4):
                assert noff(4*h+n)-n*1024>=0
                if not lin: a(f"s_add_u32 s35, {off}, {noff(4*h+n)-n*1024}")
                if win[0]>=W: a(f"s_waitcnt vmcnt({W-1})")
                win[0]+=1
                a(f"buffer_load_dwordx4 v{1+(n&1)}, s[{srd}:{srd+3}], s35 offen offset:{n*1024} {pol if srd==16 else polv} lds")
    if hs:
        assert kv and early and W>0
        cnt=[0]
        for (isv,i) in ((0,0),(1,0),(0,1),(1,1),(0,2)):
            a(f"s_mov_b32 s31, {i*SLOT}")
            half(isv, f"s{56+i}", "s31", cnt)
        a(f"""
        s_mov_b32 s34, s58
        s_mov_b32 s54, {2*SLOT}
        s_mov_b32 s31, {3*SLOT}
        """)
    for i in range(0 if hs else R-1):
        if early: a(f"s_mov_b32 s32, s{56+i}")
        elif xr:
            a(f"s_xor_b32 s32, s51, {i}")
            a(f"s_add_u32 s32, s32, s46")
        else: a(f"s_add_u32 s32, s46, {i}")
        if not early: tile_off()
        issue(i*16+16>W if W else False)
    a(f"s_mov_b32 s36, 0")
    a.label("L_lloop")
    if hs: a(f"s_waitcnt {'vmcnt(24) ' if W>24 else ''}lgkmcnt(0)      ; tile i has landed: at most 24 younger loads are in flight")
    else:
      a(f"""
    s_waitcnt vmcnt({(R-2)*16}) lgkmcnt(0)
    s_cmp_eq_u32 s36, s49
    s_cbranch_scc1 L_lend
    """)
    if lprof:
        a(f"""
        s_cmp_eq_u32 s36, {lprof-1}
        s_cbranch_scc0 L_lp
        s_memrealtime s[74:75]
        s_waitcnt lgkmcnt(0)
        """)
        a.label("L_lp")
    a("s_barrier")
    if hs: half(1, "s34", "s54", [W])
    a(f"""
    s_add_u32 s47, s36, {R-1}      ; n
    {'s_xor_b32 s32, s51, s47' if xr else 's_mov_b32 s32, s47'}
    s_add_u32 s32, s46, s32
    s_cmp_lt_u32 s47, {NS}
    s_cbranch_scc1 L_static
    """)
    if dyn:
        a(f"""
        s_and_b32 s48, s47, 3
        v_readlane_b32 s32, v20, s48
        s_nop 3
        s_add_u32 s32, s32, {4*NS}
        """)
    else:
        a(f"s_mov_b32 s32, {NTOT}")
    if kv:
        assert dyn and not nodma
        a(f"""
        s_cmp_lt_u32 s32, {NTOT}
        s_cbranch_scc0 L_lendgame
        """)
    else:
      a(f"""
    s_cmp_lt_u32 s32, {NTOT}
    s_cselect_b32 s18, 0x200000, 0
    s_cselect_b32 s22, 0x200000, 0
    s_cselect_b32 s48, s49, s47
    s_min_u32 s49, s49, s48
    v_mov_b32 v21, s49
    ds_write_b32 v22, v21
    """)
    a.label("L_static")
    tile_off()
    if hs:
        half(0, "s32", "s31", [W])
        a(f"""
        s_mov_b32 s34, s32
        s_mov_b32 s54, s31
        s_add_u32 s31, s31, {SLOT}
        s_and_b32 s31, s31, {R*SLOT-1}
        """)
    else: issue(True)
    a(f"""
    s_cmp_eq_u32 s36, {HSI}
    s_cbranch_scc0 L_nohs1
    global_load_dwordx2 v[26:27], v23, s[12:13] {xp}
    """)
    a.label("L_nohs1")
    a(f"""
    s_cmp_eq_u32 s36, {HSI+R-1}
    s_cbranch_scc0 L_nohs2
    s_mov_b32 s50, {spin}
    """)
    a.label("L_lhs")
    a(f"""
    v_readfirstlane_b32 s48, v26
    s_sub_u32 s50, s50, 1
    s_cmp_eq_u32 s50, 0
    s_cbranch_scc1 L_hsok
    s_cmp_lg_u32 s48, 0
    s_cbranch_scc1 L_hsok
    global_load_dwordx2 v[26:27], v23, s[12:13] {xp}
    s_waitcnt vmcnt(0)
    s_branch L_lhs
    """)
    a.label("L_hsok")
    a("ds_write_b64 v22, v[26:27] offset:8")
    a.label("L_nohs2")
    if dyn:
        assert HSI+R-1 < NS-2*(R-1)
        a(f"""
        s_cmp_lt_u32 s36, {NS-2*(R-1)}
        s_cbranch_scc1 L_noclaim
        s_add_u32 s48, s36, {2*(R-1)}
        s_and_b32 s48, s48, 3
        s_lshl_b64 exec, 1, s48
        global_atomic_add v20, v23, v24, s[38:39] sc0
        s_mov_b64 exec, -1
        """)
        a.label("L_noclaim")
    a(f"""
    s_add_u32 s36, s36, 1
    s_branch L_lloop
    """)
    if kv:
        a.label("L_lendgame")
        a(f"""
        v_mov_b32 v21, s47
        ds_write_b32 v22, v21
        s_waitcnt vmcnt({17 if hs else 18}) lgkmcnt(0)
        s_barrier                      ; tile E-2
        s_waitcnt vmcnt(9)
        s_barrier
        s_waitcnt vmcnt({0 if hs else kvl})
        s_barrier
        """)
    a.label("L_lend")
    a("s_waitcnt vmcnt(0)")
    if lprof:
        a(f"""
        s_lshl_b32 s3, s2, 6
        s_add_u32 s14, s14, s3
        s_addc_u32 s15, s15, 0
        s_add_u32 s14, s14, {TS_OFF}
        s_addc_u32 s15, s15, 0
        v_mov_b32 v32, s72
        v_mov_b32 v33, s73
        v_mov_b32 v34, s74
        v_mov_b32 v35, s75
        v_mov_b32 v8, 0
        global_store_dwordx4 v8, v[32:35], s[14:15] offset:48
        s_waitcnt vmcnt(0)
        """)
    a("s_endpgm")

    a.label("L_comp")
    a(f"""
    v_and_b32 v4, 15, v3
    v_lshrrev_b32 v5, 4, v3       ; g
    s_lshl_b32 s27, s25, 2
    s_add_u32 s27, s27, s24       ; 4p+w
    s_lshl_b32 s28, s27, 12
    v_lshlrev_b32 v6, 8, v4
    v_lshl_add_u32 v7, v5, 4, v6    ; q*256+g*16
    s_waitcnt lgkmcnt(0)
    s_add_u32 s4, s4, s28
    s_addc_u32 s5, s5, 0
    """)
    for s in range(4):
        a(f"global_load_dwordx4 v[{Q0+4*s}:{Q0+4*s+3}], v7, s[4:5] offset:{64*s}")
    a(f"""
    s_or_b32 s30, s2, s24
    s_cmp_lg_u32 s30, 0
    s_cbranch_scc1 L_noclear
    s_memrealtime s[50:51]
    v_mov_b32 v8, 0
    v_mov_b32 v9, 0
    v_mov_b32 v10, 0
    v_mov_b32 v11, 0
    v_lshlrev_b32 v12, {csh}, v3
    global_store_dwordx4 v12, v[8:11], s[14:15] {xp}
    s_waitcnt vmcnt(0) lgkmcnt(0)
    s_or_b32 s50, s50, 1
    v_mov_b32 v14, s50
    v_mov_b32 v15, s51
    s_mov_b64 exec, 1
    global_store_dwordx2 v8, v[14:15], s[12:13] {xp}
    s_mov_b64 exec, -1
    """)
    a.label("L_noclear")
    a(f"""
    s_lshl_b32 s28, s27, 15        ; (4p+w)*32KiB
    s_add_u32 s40, s14, s28
    s_addc_u32 s41, s15, 0
    s_add_u32 s40, s40, {XB_OFF}
    s_addc_u32 s41, s41, 0
    s_lshl_b32 s28, s27, 12
    s_add_u32 s10, s10, s28
    s_addc_u32 s11, s11, 0
    v_lshlrev_b32 v7, 4, v3        ; lane*16
    v_lshlrev_b32 v6, 8, v4        ; q*256
    v_lshl_add_u32 v6, v5, 3, v6   ; + g*8
    s_lshl_b32 s28, s26, 6         ; 2j*32
    v_add_u32 v{OADR}, s28, v6
    s_lshl_b32 s28, s26, 8
    s_add_u32 s28, s28, {XB_ML}
    v_lshl_add_u32 v{MLO}, v4, 4, s28
    s_lshl_b32 s28, s26, 7
    s_add_u32 s28, s28, {XB_FL}
    v_mov_b32 v{FLO}, s28
    v_and_b32 v8, 3, v3
    v_lshlrev_b32 v8, 7, v8
    v_add_u32 v{FLP}, {XB_FL}, v8
    """)
    if chk:
        a(f"""
        v_and_b32 v8, 3, v3
        s_add_u32 s28, s26, 1
        v_add_u32 v8, s28, v8
        v_and_b32 v8, 3, v8
        v_lshrrev_b32 v9, 2, v3
        v_lshlrev_b32 v9, 3, v9        ; quad * 8
        s_lshl_b32 s28, s26, 7
        s_add_u32 s28, s28, {XB_CK}
        v_lshl_add_u32 v10, v8, 9, v9
        v_add_u32 v{FLO}, s28, v10
        s_lshl_b32 s28, s26, 9
        s_add_u32 s28, s28, {XB_CK}
        v_lshl_add_u32 v10, v8, 7, v9
        v_add_u32 v{FLP}, s28, v10
        s_mov_b32 s84, 0x11111111
        s_mov_b32 s85, 0x11111111
        s_mov_b32 s86, 0x22222222
        s_mov_b32 s87, 0x22222222
        s_mov_b32 s88, 0x77777777
        s_mov_b32 s89, 0x77777777
        """)
        for i,c in enumerate(CKC): a(f"s_mov_b32 s{76+i}, 0x{c:x}")
        a("s_mov_b32 s90, 4096          ; bound on the reload loop")
    for u in range(1,4):
        a(f"""
        s_add_u32 s28, s26, {u}
        s_and_b32 s28, s28, 3
        s_lshl_b32 s29, s28, 2
        s_add_u32 s29, s29, s26
        s_lshl_b32 s29, s29, 10
        v_add_u32 v{XAO+u-1}, s29, v7
        s_lshl_b32 s29, s26, 2
        s_add_u32 s29, s29, s28
        s_lshl_b32 s29, s29, 10
        v_add_u32 v{XAI+u-1}, s29, v7
        s_lshl_b32 s29, s28, 8
        s_add_u32 s29, s29, {XB_ML}
        v_lshl_add_u32 v{MLI+u-1}, v4, 4, s29
        """)
    a(f"""
    v_and_b32 v7, 7, v4
    v_lshlrev_b32 v7, 1, v7
    v_xor_b32 v7, v7, v5
    v_lshlrev_b32 v7, 4, v7
    v_lshl_add_u32 v{KA}, v4, 8, v7
    """)
    for s in range(1,4):
        a(f"v_xor_b32 v{KA+s}, {s<<6}, v{KA}")
    a(f"""
    v_lshrrev_b32 v7, 2, v4        ; r
    v_lshl_add_u32 v7, v5, 2, v7   ; key=4g+r
    v_and_b32 v14, 7, v7           ; k7
    v_and_b32 v15, 3, v3           ; c
    v_lshlrev_b32 v15, 3, v15      ; c*8
    v_lshl_add_u32 v15, v7, 8, v15 ; key*256 + c*8
    v_lshl_add_u32 v15, v14, 5, v15 ; + k7<<5      (db=0)
    s_lshl_b32 s30, s26, 1
    """)
    for t in range(8):
        a(f"s_add_u32 s34, s30, {t}")
        a(f"s_and_b32 s34, s34, 7")
        a(f"s_lshl_b32 s34, s34, 5")
        a(f"v_xor_b32 v{VB+t}, s34, v15")
    for i in range(32): a(f"v_mov_b32 v{O0+i}, 0")
    for i in range(4): a(f"v_mov_b32 v{L0+i}, 0")
    for i in range(4): a(f"v_mov_b32 v{ONE+i}, 0x3f803f80")
    for i in range(32): a(f"v_mov_b32 v{VA+32+i}, 0")
    for i in range(8): a(f"v_mov_b32 v{SS+8+i}, 0xff800000")
    a(f"""
    v_mov_b32 v{VM}, 0xff61b1e6
    v_mov_b32 v{VMC}, 0xff61b1e6
    v_mov_b32 v{VTH}, 0xff61b1e6
    v_mov_b32 v{VMAILA}, {MAIL}
    s_mov_b32 s37, 0x{C_SCALE:x}
    s_mov_b32 s44, 0x{fbits(THR/CF):x}
    s_mov_b32 s36, {1 if kv else 0}
    s_lshl_b32 s45, 1, s26
    s_waitcnt vmcnt(0)
    """)
    if cyc: stamp(6); a("s_waitcnt lgkmcnt(0)")

    def check(sb, lbl):
        S=SS+8*sb
        a(f"""
        v_max3_f32 v{T0}, v{S}, v{S+1}, v{S+2}
        v_max3_f32 v{T1}, v{S+3}, v{S+4}, v{S+5}
        v_max3_f32 v{T0}, v{T0}, v{S+6}, v{S+7}
        v_max_f32 v{T0}, v{T0}, v{T1}
        v_cmp_gt_f32 vcc, v{T0}, v{VTH}
        s_cbranch_vccnz L_rare{lbl}
        """)
        a.label(f"L_ret{lbl}")
    def softmax_B(sb):
        S=SS+8*sb
        for i in range(8): a(f"v_fma_f32 v{S+i}, v{S+i}, s37, -v{VMC}")
        for i in range(8): a(f"v_exp_f32 v{S+i}, v{S+i}")
        for i in range(4): a(f"v_cvt_pk_bf16_f32 v{P0+i}, v{S+2*i}, v{S+2*i+1}")
    def pv(vb, t):
        V=VA+32*vb
        a(f"v_mfma_f32_16x16x32_bf16 v[{O0+4*t}:{O0+4*t+3}], v[{V+4*t}:{V+4*t+3}], v[{P0}:{P0+3}], v[{O0+4*t}:{O0+4*t+3}]")
    def lsum():
        a(f"v_mfma_f32_16x16x32_bf16 v[{L0}:{L0+3}], v[{ONE}:{ONE+3}], v[{P0}:{P0+3}], v[{L0}:{L0+3}]")
    def rare(lbl):
        a.label(f"L_rare{lbl}")
        a(f"""
        v_max_f32 v{T0}, v{T0}, v{VM}
        v_mov_b32 v{T1}, v{T0}
        s_nop 1
        v_permlane16_swap_b32 v{T0}, v{T1}
        v_max_f32 v{T0}, v{T0}, v{T1}
        v_mov_b32 v{T1}, v{T0}
        s_nop 1
        v_permlane32_swap_b32 v{T0}, v{T1}
        v_max_f32 v{VM}, v{T0}, v{T1}
        v_mul_f32 v{T2}, s37, v{VM}
        v_add_f32 v{VTH}, s44, v{VM}
        v_sub_f32 v{T3}, v{VMC}, v{T2}
        v_exp_f32 v{T3}, v{T3}
        v_mov_b32 v{VMC}, v{T2}
        s_nop 0
        """)
        for i in range(4): a(f"v_mul_f32 v{L0+i}, v{T3}, v{L0+i}")
        for i in range(32): a(f"v_mul_f32 v{O0+i}, v{T3}, v{O0+i}")
        a(f"s_branch L_ret{lbl}")

    a.label("L_cloop")
    for r in range(R):
        cur=r&1; prev=cur^1
        base=r*SLOT
        S=SS+8*cur
        V=VA+32*cur
        if pre:
            assert kv and not prof and not touch and not nocomp
            def vread(t,hb):
                a(f"ds_read_b64_tr_b16 v[{V+4*t+2*hb}:{V+4*t+2*hb+1}], v{VB+t} offset:{base+8192+hb*4096}")
            def qk(kb,s):
                c = "0" if s==0 else f"v[{S+4*kb}:{S+4*kb+3}]"
                a(f"v_mfma_f32_16x16x32_bf16 v[{S+4*kb}:{S+4*kb+3}], v[{K0+16*kb+4*s}:{K0+16*kb+4*s+3}], v[{Q0+4*s}:{Q0+4*s+3}], {c}")
            check(prev, r)
            softmax_B(prev)
            a("s_nop 1")
            lsum()
            for t in range(8): pv(prev,t)
            a("s_barrier")
            a(f"ds_read_b32 v{VMAIL}, v{VMAILA}")
            for kb in range(2):
                for s in range(4):
                    a(f"ds_read_b128 v[{K0+16*kb+4*s}:{K0+16*kb+4*s+3}], v{KA+s} offset:{base+kb*4096}")
            vl=[(t,hb) for t in range(8) for hb in range(2)]
            for x in vl[:6]: vread(*x)
            a("s_waitcnt lgkmcnt(6)")
            for s in range(4):
                qk(0,s); qk(1,s)
                if s<3:
                    for x in vl[6+2*s:8+2*s]: vread(*x)
            a("s_waitcnt lgkmcnt(11)")
            for x in vl[12:]: vread(*x)
            a(f"s_add_u32 s36, s36, 1")
            a(f"s_waitcnt lgkmcnt(0)")
            a(f"v_cmp_eq_u32 vcc, s36, v{VMAIL}")
            a(f"s_cbranch_vccnz L_last{(r+1)%R}")
            continue
        a("s_barrier")
        if prof and r==0:
            for (it,sl) in ((4,3),(24,6),(44,7)):
                a(f"s_cmp_eq_u32 s36, {it}")
                a(f"s_cbranch_scc0 L_pr{sl}")
                a(f"s_memrealtime s[{60+2*sl}:{61+2*sl}]")
                a("s_waitcnt lgkmcnt(0)")
                a.label(f"L_pr{sl}")
        if r==0 and touch and not noepi:
            a(f"s_cmp_eq_u32 s36, {touch}")
            a("s_cbranch_scc1 L_touch")
            a.label("L_touchret")
        a(f"ds_read_b32 v{VMAIL}, v{VMAILA}")
        if not nocomp:
            for kb in range(2):
                for s in range(4):
                    a(f"ds_read_b128 v[{K0+16*kb+4*s}:{K0+16*kb+4*s+3}], v{KA+s} offset:{base+kb*4096}")
            check(prev, r)
            softmax_B(prev)
            def vread(t,hb):
                a(f"ds_read_b64_tr_b16 v[{V+4*t+2*hb}:{V+4*t+2*hb+1}], v{VB+t} offset:{base+8192+hb*4096}")
            def qk(kb,s):
                c = "0" if s==0 else f"v[{S+4*kb}:{S+4*kb+3}]"
                a(f"v_mfma_f32_16x16x32_bf16 v[{S+4*kb}:{S+4*kb+3}], v[{K0+16*kb+4*s}:{K0+16*kb+4*s+3}], v[{Q0+4*s}:{Q0+4*s+3}], {c}")
            vread(0,0); vread(0,1)
            lsum()
            vread(1,0); vread(1,1)
            pv(prev,0)
            vread(2,0); vread(2,1)
            pv(prev,1)
            a("s_waitcnt lgkmcnt(6)")
            for t in range(2,6):
                pv(prev,t); vread(t+1,0); vread(t+1,1)
            pv(prev,6)
            vread(7,0)
            pv(prev,7)
            a("s_waitcnt lgkmcnt(14)")
            vread(7,1)
            for s in range(4): qk(0,s); qk(1,s)
        a(f"s_add_u32 s36, s36, 1")
        a(f"s_waitcnt lgkmcnt(0)")
        a(f"v_cmp_eq_u32 vcc, s36, v{VMAIL}")
        a(f"s_cbranch_vccnz L_last{(r+1)%R}" if kv else f"s_cbranch_vccnz L_drain{cur}")
    a("s_branch L_cloop")
    if kv:
        assert not nocomp and not prof and not touch
        for r in range(R):
            cur=r&1; prev=cur^1; base=r*SLOT; S=SS+8*cur; V=VA+32*cur
            def vread(t,hb):
                a(f"ds_read_b64_tr_b16 v[{V+4*t+2*hb}:{V+4*t+2*hb+1}], v{VB+t} offset:{base+8192+hb*4096}")
            def qk(kb,s_):
                c = "0" if s_==0 else f"v[{S+4*kb}:{S+4*kb+3}]"
                a(f"v_mfma_f32_16x16x32_bf16 v[{S+4*kb}:{S+4*kb+3}], v[{K0+16*kb+4*s_}:{K0+16*kb+4*s_+3}], v[{Q0+4*s_}:{Q0+4*s_+3}], {c}")
            a.label(f"L_last{r}")
            if kvprof==1: a("s_memrealtime s[72:73]")
            a("s_barrier")
            if kvprof==1: a("s_memrealtime s[74:75]")
            for kb in range(2):
                for s_ in range(4):
                    a(f"ds_read_b128 v[{K0+16*kb+4*s_}:{K0+16*kb+4*s_+3}], v{KA+s_} offset:{base+kb*4096}")
            a(f"ds_read_b64 v[{VMAIL}:{VMAIL+1}], v{VMAILA} offset:8")
            check(prev, f"p{r}")
            softmax_B(prev)
            a("s_nop 1")
            lsum()
            for t in range(4): pv(prev,t)
            a("s_waitcnt lgkmcnt(0)")
            for s_ in range(4): qk(0,s_); qk(1,s_)
            for t in range(4,8): pv(prev,t)
            a("s_nop 3")
            check(cur, f"c{r}")
            softmax_B(cur)
            if kvprof==2: a("s_memrealtime s[72:73]")
            a("s_barrier")
            if kvprof==2: a("s_memrealtime s[74:75]")
            if kvprof==2: a("s_waitcnt lgkmcnt(0)")
            for t in range(2,8): vread(t,0); vread(t,1)
            lsum()
            a("s_waitcnt lgkmcnt(10)"); pv(cur,2); vread(0,0); vread(0,1)
            a("s_waitcnt lgkmcnt(10)"); pv(cur,3); vread(1,0); vread(1,1)
            for (t,n) in ((4,10),(5,8),(6,6),(7,4),(0,2),(1,0)):
                a(f"s_waitcnt lgkmcnt({n})"); pv(cur,t)
            a("s_branch L_epi")
    if touch and not noepi:
        assert touch%R==0
        a.label("L_touch")
        if tmode==0:
            a(f"""
            s_mov_b64 exec, 1
            global_load_dword v{DUM}, v{FLO}, s[40:41]
            global_load_dword v{DUM}, v{OADR}, s[10:11]
            s_mov_b64 exec, -1
            s_branch L_touchret
            """)
        else:
            a(f"""
            s_mov_b64 exec, 15
            global_load_dword v{DUM}, v{FLP}, s[40:41] {tpol}
            s_mov_b64 exec, -1
            s_branch L_touchret
            """)
    for par in range(0 if kv else 2):
        a.label(f"L_drain{par}")
        a(f"ds_read_b64 v[{VMAIL}:{VMAIL+1}], v{VMAILA} offset:8")
        if not nocomp:
            a("s_nop 7")
            check(par, f"d{par}")
            softmax_B(par)
            a("s_nop 1")
            lsum()
            for t in (2,3,4,5,6,7,0,1): pv(par,t)
        a("s_branch L_epi")
    if not nocomp:
        for r in range(R): rare(r)
        if kv:
            for r in range(R): rare(f"p{r}"); rare(f"c{r}")
        else:
            rare("d0"); rare("d1")
    a.label("L_epi")
    stamp(1)
    if cyc: stamp(7)
    if not noepi:
        o=O0+8
        pregs=[76,78,80,82]
        def pcmp(rg):
            if chk: return f"v_cmp_eq_u32 vcc, v{rg+1}, v{VMAIL}"
            return f"v_cmp_eq_u64 vcc, v[{rg}:{rg+1}], v[{VMAIL}:{VMAIL+1}]"
        def pollins(rg):
            if pollop=='load': return f"global_load_dwordx2 v[{rg}:{rg+1}], v{FLP}, s[40:41] {xp}"
            return f"global_atomic_add_x2 v[{rg}:{rg+1}], v{FLP}, v[84:85], s[40:41] {pollop}"
        if pollop!='load':
            a("v_mov_b32 v84, 0")
            a("v_mov_b32 v85, 0")
        a("s_nop 4")
        a(f"v_max3_f32 v{T0}, |v{o}|, |v{o+1}|, |v{o+2}|")
        a(f"v_max3_f32 v{T1}, |v{o+3}|, |v{o+4}|, |v{o+5}|")
        k=6; t=0
        while k<24:
            tr=(T0,T1)[t&1]
            a(f"v_max3_f32 v{tr}, v{tr}, |v{o+k}|, |v{o+k+1}|")
            k+=2; t+=1
        a(f"""
        v_max_f32 v{T0}, v{T0}, v{T1}
        v_mov_b32 v{GM}, v{VMC}
        v_mov_b32 v{T1}, v{T0}
        v_mov_b32 v{GM+1}, v{L0}
        s_nop 0
        v_permlane16_swap_b32 v{T0}, v{T1}
        v_max_f32 v{T0}, v{T0}, v{T1}
        v_mov_b32 v{T1}, v{T0}
        v_mov_b32 v{GM+3}, 0
        s_nop 0
        v_permlane32_swap_b32 v{T0}, v{T1}
        v_max_f32 v{T0}, v{T0}, v{T1}
        v_frexp_exp_i32_f32 v{T1}, v{T0}
        v_sub_u32 v{T1}, 15, v{T1}
        v_min_i32 v{GM+2}, 0x7e, v{T1}
        v_ldexp_f32 v12, 1.0, v{GM+2}
        """)
        CS=60; CU=[61,62,63]
        def dpp2():
            for (qp,pre) in (("[1,0,3,2]",True),("[2,3,0,1]",False)):
                a(f"v_add_u32_dpp v{CU[0]}, v{CU[0]}, v{CU[0]} quad_perm:{qp} row_mask:0xf bank_mask:0xf")
                a(f"v_add_u32_dpp v{CU[1]}, v{CU[1]}, v{CU[1]} quad_perm:{qp} row_mask:0xf bank_mask:0xf")
                if pre: a("s_nop 0")
                a(f"v_add_u32_dpp v{CU[2]}, v{CU[2]}, v{CU[2]} quad_perm:{qp} row_mask:0xf bank_mask:0xf")
        if chk:
            a(f"""
            s_mov_b64 exec, 0xffff
            global_store_dwordx4 v{MLO}, v[{GM}:{GM+3}], s[40:41] {xst}
            s_mov_b64 exec, -1
            s_waitcnt lgkmcnt(0)
            v_dot2_u32_u16 v{CS}, v{GM}, s80, v{VMAIL+1}
            v_dot2_u32_u16 v{CS}, v{GM+1}, s81, v{CS}
            v_dot2_u32_u16 v{CS}, v{GM+2}, s82, v{CS}
            """)
        for u in range(1,4):
            ob=O0+8*u; g=G0+4*(u-1)
            for i in range(4):
                a(f"v_pk_mul_f32 v[{ob+2*i}:{ob+2*i+1}], v[{ob+2*i}:{ob+2*i+1}], v[12:13] op_sel_hi:[1,0]")
            for i in range(4):
                a(f"v_cvt_pk_f16_f32 v{g+i}, v{ob+2*i}, v{ob+2*i+1}")
            if chk!=2: a(f"global_store_dwordx4 v{XAO+u-1}, v[{g}:{g+3}], s[40:41] {xst}")
            if chk:
                for i in range(4):
                    a(f"v_dot2_u32_u16 v{CU[u-1]}, v{g+i}, s{76+i}, v{CS if i==0 else CU[u-1]}")
        if chk:
            dpp2()
            a(f"""
            v_cndmask_b32 v14, v{CU[2]}, v{CU[1]}, s[86:87]
            v_mov_b32 v15, v{VMAIL}
            v_cndmask_b32 v14, v14, v{CU[0]}, s[84:85]
            s_mov_b64 exec, s[88:89]
            global_store_dwordx2 v{FLO}, v[14:15], s[40:41] {xst}
            """)
            if chk==2:
                a("s_mov_b64 exec, -1")
                for u in range(1,4):
                    g=G0+4*(u-1)
                    a(f"global_store_dwordx4 v{XAO+u-1}, v[{g}:{g+3}], s[40:41] {xst}")
        else:
          a(f"""
        s_mov_b64 exec, 0xffff
        global_store_dwordx4 v{MLO}, v[{GM}:{GM+3}], s[40:41] {xst}
        s_mov_b64 exec, 1
        s_waitcnt vmcnt(0) lgkmcnt(0)
        {f"global_store_dwordx2 v{FLO}, v[{VMAIL}:{VMAIL+1}], s[40:41] {xst}" if flop=='store' else f"global_atomic_swap_x2 v{FLO}, v[{VMAIL}:{VMAIL+1}], s[40:41] {flop}"}
        """)
        stamp(2)
        a(f"""
        {'s_mov_b32 s46, 7' if chk else 's_andn2_b32 s46, 15, s45'}
        s_mov_b32 s47, 0
        s_mov_b64 exec, s[46:47]
        s_mov_b32 s36, {spin}
        """)
        if npoll==1:
            a("s_branch L_poll0")
            a.label("L_poll")
            if psleep: a(f"s_sleep {psleep}")
            a.label("L_poll0")
            a(f"""
            {pollins(pregs[0])}
            s_sub_u32 s36, s36, 1
            s_cmp_eq_u32 s36, 0
            s_cbranch_scc1 L_poll_ok
            s_waitcnt vmcnt(0)
            {pcmp(pregs[0])}
            s_cmp_eq_u32 vcc_lo, s46
            s_cbranch_scc0 L_poll
            """)
        else:
            regs=pregs[:npoll]
            for i,rg in enumerate(regs):
                a(pollins(rg))
                if i<npoll-1: a(f"s_sleep {psleep}")
            a.label("L_poll")
            for i,rg in enumerate(regs):
                a(f"""
                s_waitcnt vmcnt({npoll-1})
                {pcmp(rg)}
                s_cmp_eq_u32 vcc_lo, s46
                s_cbranch_scc1 L_poll_ok
                {pollins(rg)}
                """)
            a(f"""
            s_sub_u32 s36, s36, 1
            s_cmp_eq_u32 s36, 0
            s_cbranch_scc0 L_poll
            """)
        a.label("L_poll_ok")
        a("s_mov_b64 exec, -1")
        stamp(3)
        if pwait: a("s_waitcnt vmcnt(0)")
        AC=88
        if chk: a.label("L_reload")
        for u in range(1,4):
            a(f"global_load_dwordx4 v[{XML+4*(u-1)}:{XML+4*(u-1)+3}], v{MLI+u-1}, s[40:41] {xp}")
        for u in range(1,4):
            a(f"global_load_dwordx4 v[{X0+4*(u-1)}:{X0+4*(u-1)+3}], v{XAI+u-1}, s[40:41] {xp}")
        nl=3
        if chk:
            a(f"""
            s_mov_b64 exec, s[88:89]
            global_load_dwordx2 v[86:87], v{FLP}, s[40:41] {xp}
            s_mov_b64 exec, -1
            """)
            nl=4
        a(f"s_waitcnt vmcnt({nl})")
        m=[VMC, XML, XML+4, XML+8]
        l=[L0, XML+1, XML+5, XML+9]
        kk=[None, XML+2, XML+6, XML+10]
        if chk:
            for u in range(1,4):
                a(f"v_dot2_u32_u16 v{CU[u-1]}, v{m[u]}, s80, v{VMAIL+1}")
            for u in range(1,4):
                a(f"v_dot2_u32_u16 v{CU[u-1]}, v{l[u]}, s81, v{CU[u-1]}")
            for u in range(1,4):
                a(f"v_dot2_u32_u16 v{CU[u-1]}, v{kk[u]}, s82, v{CU[u-1]}")
        a(f"""
        v_max3_f32 v{T0}, v{m[0]}, v{m[1]}, v{m[2]}
        v_max_f32 v{T0}, v{T0}, v{m[3]}
        v_sub_f32 v12, v{m[0]}, v{T0}
        v_sub_f32 v13, v{m[1]}, v{T0}
        v_sub_f32 v14, v{m[2]}, v{T0}
        v_sub_f32 v15, v{m[3]}, v{T0}
        v_exp_f32 v12, v12
        v_exp_f32 v13, v13
        v_exp_f32 v14, v14
        v_exp_f32 v15, v15
        v_sub_u32 v{kk[1]}, 0, v{kk[1]}
        v_sub_u32 v{kk[2]}, 0, v{kk[2]}
        v_sub_u32 v{kk[3]}, 0, v{kk[3]}
        v_mul_f32 v{T1}, v{l[0]}, v12
        v_fmac_f32 v{T1}, v{l[1]}, v13
        v_fmac_f32 v{T1}, v{l[2]}, v14
        v_fmac_f32 v{T1}, v{l[3]}, v15
        v_rcp_f32 v{T3}, v{T1}
        v_ldexp_f32 v13, v13, v{kk[1]}
        v_ldexp_f32 v14, v14, v{kk[2]}
        v_ldexp_f32 v15, v15, v{kk[3]}
        """)
        for i in range(8):
            a(f"v_mul_f32 v{AC+i}, v{O0+i}, v12")
        a(f"""
        v_fma_f32 v{T2}, -v{T1}, v{T3}, 1.0
        v_fmac_f32 v{T3}, v{T3}, v{T2}
        """)
        a("s_waitcnt vmcnt(0)")
        stamp(4)
        def mix(u):
            for i in range(8):
                a(f"v_fma_mix_f32 v{AC+i}, v{X0+4*(u-1)+i//2}, v{12+u}, v{AC+i} op_sel:[{i&1},0,0] op_sel_hi:[1,0,0]")
        if chk:
            for i in range(4):
                for u in range(1,4):
                    a(f"v_dot2_u32_u16 v{CU[u-1]}, v{X0+4*(u-1)+i}, s{76+i}, v{CU[u-1]}")
            mix(1)
            for u in range(3): a(f"v_add_u32_dpp v{CU[u]}, v{CU[u]}, v{CU[u]} quad_perm:[1,0,3,2] row_mask:0xf bank_mask:0xf")
            mix(2)
            for u in range(3): a(f"v_add_u32_dpp v{CU[u]}, v{CU[u]}, v{CU[u]} quad_perm:[2,3,0,1] row_mask:0xf bank_mask:0xf")
            mix(3)
            a(f"""
            v_cndmask_b32 v{T0}, v{CU[2]}, v{CU[1]}, s[86:87]
            v_cndmask_b32 v{T0}, v{T0}, v{CU[0]}, s[84:85]
            v_cmp_ne_u32 vcc, v{T0}, v86
            s_and_b64 vcc, vcc, s[88:89]
            s_cbranch_scc0 L_verified
            s_sub_u32 s90, s90, 1
            s_cmp_eq_u32 s90, 0
            s_cbranch_scc0 L_reload
            """)
            a.label("L_verified")
        else:
            for u in range(1,4): mix(u)
        for i in range(8):
            a(f"v_mul_f32 v{O0+i}, v{AC+i}, v{T3}")
        a(f"""
        v_cvt_pk_bf16_f32 v12, v{O0}, v{O0+1}
        v_cvt_pk_bf16_f32 v13, v{O0+2}, v{O0+3}
        v_cvt_pk_bf16_f32 v14, v{O0+4}, v{O0+5}
        v_cvt_pk_bf16_f32 v15, v{O0+6}, v{O0+7}
        global_store_dwordx2 v{OADR}, v[12:13], s[10:11] {opol}
        global_store_dwordx2 v{OADR}, v[14:15], s[10:11] offset:32 {opol}
        """)
    if ts:
        a("s_waitcnt vmcnt(0)")
        a("v_mov_b32 v8, 0")
        stamp(5)
        a(f"""
        s_waitcnt lgkmcnt(0)
        s_cmp_lg_u32 s24, 0
        s_cbranch_scc1 L_done
        s_lshl_b32 s3, s2, 6
        s_add_u32 s14, s14, s3
        s_addc_u32 s15, s15, 0
        s_add_u32 s14, s14, {TS_OFF}
        s_addc_u32 s15, s15, 0
        """)
        if cyc:
            a("s_sub_u32 s72, s74, s72")
            a("s_mov_b32 s73, 0")
        elif not prof and not kvprof:
            a("s_mov_b32 s72, s90" if chk else "s_mov_b32 s72, s36")
            a("s_mov_b32 s73, 0")
        if not prof and not kvprof:
            a("s_mov_b32 s74, 0")
            a("s_mov_b32 s75, 0")
        for i in range(0,6 if lprof else 8,2):
            a(f"""
            v_mov_b32 v{32+2*i}, s{60+2*i}
            v_mov_b32 v{33+2*i}, s{61+2*i}
            v_mov_b32 v{34+2*i}, s{62+2*i}
            v_mov_b32 v{35+2*i}, s{63+2*i}
            global_store_dwordx4 v8, v[{32+2*i}:{35+2*i}], s[14:15] offset:{8*i}
            """)
    a.label("L_done")
    a("s_endpgm")
    txt=HDR+f"; @launch grid=(256,1,1) block=(320,1,1) lds={lds}\n"+'.amdgcn_target "amdgcn-amd-amdhsa--gfx950"\n.text\n'+kernel_head(NAME)+a.text()+'.section .rodata,"a"\n.p2align 6\n'+kernel_desc(NAME,nv or NVGPR)
    return txt

if __name__=='__main__':
    import ast
    out=sys.argv[1]
    kw={}
    for x in sys.argv[2:]:
        k,v=x.split('=')
        try: v=ast.literal_eval(v)
        except Exception: pass
        kw[k]=v
    open(out,'w').write(gen(**kw))
```

```python
import sys, struct
from asmlib import *

NAME='standalone__gqa_softmax__sampling_kernel'
def fbits(x): return struct.unpack('<I',struct.pack('<f',x))[0]
CF = 0.08838834764831845*1.4426950408889634
C_SCALE = fbits(CF)

Q0=16
K0=32
VA=64
SS=128
P0=144
O0=148
L0=180
ONE=184
KA=188
VB=192
VM=200; VMC=201; VTH=202
T0=203; T1=204; T2=205; T3=206
VMAILA=207; VMAIL=208
XAO=210
XAI=213
OADR=216
MLO=217
MLI=218
FLO=221
FLP=222
DUM=223
NVGPR=224
X0=32
G0=44
GM=56
XML=64

XB_OFF=1<<20
XB_ML=16384
XB_FL=16384+1024
XB_CK=16384+2048
CKC=[0x9e3579b1,0x85eb4a6b,0xc2b3ae35,0x27d52f2f,0x165767b1,0xd3a3646d,0xfd71c5a7]
TS_OFF=480<<20
R=4
SLOT=16384
MAIL=R*SLOT

def gen(W=24, pol='nt', polv=None, mapping=1, ts=False, spin=1<<16, cyc=False, THR=8.0, lprio=0,
        nodma=False, nocomp=False, NS=48, dyn=True, psleep=1, HSI=None, noepi=False, opol='', csh=10,
        touch=8, trim=False, cl4=False, pre=False, hs=False, kv=False, kvl=1, kvprof=0, lw0=False, early=False, chk=False, pwait=None, pollop='load', flop='store', tmode=0, tpol='sc1', xp='sc1', xst='sc1', prof=False, lprof=0, nv=None, npoll=1, xr=None, gx=None, pat='r0 r1 t0 t1 n0 n1 n2 t2 t3 t4 t5 t6 t7'):
    if polv is None: polv=pol
    toks=pat.split(); assert sorted(toks)==sorted(['r0','r1','n0','n1','n2']+[f't{i}' for i in range(8)])
    pos={x:8+i for i,x in enumerate(toks)}
    def noff(n): return sum(((n>>b)&1)<<pos[f'n{b}'] for b in range(3))
    runs=[]
    for b in range(8):
        if runs and runs[-1][0]+runs[-1][1]==b and runs[-1][2]+runs[-1][1]==pos[f't{b}']:
            runs[-1]=(runs[-1][0],runs[-1][1]+1,runs[-1][2])
        else: runs.append((b,1,pos[f't{b}']))
    a=A()
    lds=MAIL+16384+128
    NTOT=256
    if not dyn: NS=64
    if HSI is None: HSI=NS-12
    if xr: assert NS%(xr[1]+1)==0
    def stamp(i):
        if ts:
            a(f"{'s_memtime' if (cyc and i in (6,7)) else 's_memrealtime'} s[{60+2*i}:{61+2*i}]")
    a(f"""
    s_cmp_ge_u32 s2, 256
    s_cbranch_scc1 L_done
    s_load_dwordx4 s[4:7], s[0:1], 0
    s_load_dwordx4 s[8:11], s[0:1], 16
    s_load_dwordx4 s[12:15], s[0:1], 32
    """)
    stamp(0)
    a("""
    v_lshrrev_b32 v2, 6, v0
    v_and_b32 v3, 63, v0
    v_readfirstlane_b32 s24, v2
    """)
    if mapping==0:
        a("""
        s_lshr_b32 s25, s2, 5
        s_lshl_b32 s25, s25, 3
        s_and_b32 s26, s2, 7
        s_or_b32 s25, s25, s26
        s_lshr_b32 s26, s2, 3
        s_and_b32 s26, s26, 3
        """)
    elif mapping==1:
        a("""
        s_lshr_b32 s25, s2, 2
        s_and_b32 s26, s2, 3
        """)
    elif mapping==2:
        a("""
        s_and_b32 s26, s2, 7
        s_lshr_b32 s27, s26, 1
        s_xor_b32 s26, s26, s27
        s_and_b32 s26, s26, 1
        s_lshr_b32 s25, s2, 3
        s_lshl_b32 s25, s25, 1
        s_or_b32 s25, s25, s26
        s_mov_b32 s26, s27
        """)
    elif mapping==3:
        a("""
        s_and_b32 s26, s2, 1
        s_lshr_b32 s25, s2, 3
        s_lshl_b32 s25, s25, 1
        s_or_b32 s25, s25, s26
        s_lshr_b32 s26, s2, 1
        s_and_b32 s26, s26, 3
        """)
    if lw0:
        a("""
        s_cmp_lg_u32 s24, 0
        s_cbranch_scc0 L_load
        s_sub_u32 s24, s24, 1
        s_branch L_comp
        """)
        a.label("L_load")
    else:
        a(f"""
        s_cmp_lt_u32 s24, 4
        s_cbranch_scc1 L_comp
        """)
    if lprio: a(f"s_setprio {lprio}")
    a(f"""
    s_lshl_b32 s29, s25, 21
    v_lshrrev_b32 v4, 4, v3      ; rr
    v_and_b32 v5, 15, v3         ; c'
    v_lshlrev_b32 v6, 1, v4      ; f = rr<<1
    v_xor_b32 v5, v5, v6
    v_lshlrev_b32 v5, 4, v5
    v_and_b32 v6, 1, v4
    v_lshl_add_u32 v5, v6, {pos['r0']}, v5
    v_lshrrev_b32 v6, 1, v4
    v_lshl_add_u32 v1, v6, {pos['r1']}, v5
    v_xor_b32 v2, 0x80, v1
    s_mov_b32 s31, 0
    s_mul_i32 s46, s26, {NS}
    {f's_bfe_u32 s51, s2, 0x{((xr[1].bit_length())<<16)|xr[0]:x}' if xr else ''}
    s_mov_b32 s49, 0x7fffffff    ; E
    s_mov_b32 s55, 0
    v_mov_b32 v21, s49
    v_mov_b32 v22, {MAIL}
    v_mov_b32 v23, 0
    v_mov_b32 v24, 1
    v_mov_b32 v20, 0
    ds_write_b32 v22, v21
    """)
    for (sh,mk,ls) in (gx or []):
        a(f"""
        s_lshr_b32 s52, s25, {sh}
        s_and_b32 s52, s52, {mk}
        s_lshl_b32 s52, s52, {ls}
        s_xor_b32 s55, s55, s52
        """)
    def tile_off():
        if gx: a("s_xor_b32 s32, s32, s55")
        if len(runs)==1:
            a(f"s_lshl_b32 s32, s32, {runs[0][2]}")
        else:
            for i,(b,ln,ab) in enumerate(runs):
                d = "s52" if i==0 else "s53"
                a(f"s_bfe_u32 {d}, s32, 0x{(ln<<16)|b:x}")
                a(f"s_lshl_b32 {d}, {d}, {ab}")
                if i: a("s_add_u32 s52, s52, s53")
            a("s_mov_b32 s32, s52")
    if early:
        assert not xr
        for i in range(R-1):
            a(f"s_add_u32 s32, s46, {i}")
            tile_off()
            a(f"s_mov_b32 s{56+i}, s32")
        a("s_mov_b32 s18, 0x200000")
        a("s_mov_b32 s19, 0x20000")
        a("s_mov_b32 s22, 0x200000")
        a("s_mov_b32 s23, 0x20000")
    a(f"""
    s_waitcnt lgkmcnt(0)
    {'s_memrealtime s[72:73]' if lprof else ''}
    s_add_u32 s16, s6, s29
    s_addc_u32 s17, s7, 0
    {'' if early else 's_mov_b32 s18, 0x200000'}
    {'' if early else 's_mov_b32 s19, 0x20000'}
    s_add_u32 s20, s8, s29
    s_addc_u32 s21, s9, 0
    {'' if early else 's_mov_b32 s22, 0x200000'}
    {'' if early else 's_mov_b32 s23, 0x20000'}
    s_lshl_b32 s30, s25, {csh}
    s_add_u32 s38, s14, s30
    s_addc_u32 s39, s15, 0
    """)
    def issue(win):
        if not nodma:
            for (srd,lo) in [(16,0),(20,8192)]:
                for h in range(2):
                    a(f"s_add_u32 s33, s31, {lo+h*4096}")
                    a(f"s_mov_b32 m0, s33")
                    lin = all(noff(4*h+n)==noff(4*h)+n*1024 for n in range(4))
                    if lin: a(f"s_add_u32 s35, s32, {noff(4*h)}")
                    for n in range(4):
                        assert noff(4*h+n)-n*1024>=0
                        if not lin: a(f"s_add_u32 s35, s32, {noff(4*h+n)-n*1024}")
                        if win and W: a(f"s_waitcnt vmcnt({W-1})")
                        a(f"buffer_load_dwordx4 v{1+(n&1)}, s[{srd}:{srd+3}], s35 offen offset:{n*1024} {pol if srd==16 else polv} lds")
        a(f"s_add_u32 s31, s31, {SLOT}")
        a(f"s_and_b32 s31, s31, {R*SLOT-1}")
    def half(isv, off, slot, win):
        srd,lo = (20,8192) if isv else (16,0)
        for h in range(2):
            a(f"s_add_u32 s33, {slot}, {lo+h*4096}")
            a(f"s_mov_b32 m0, s33")
            lin = all(noff(4*h+n)==noff(4*h)+n*1024 for n in range(4))
            if lin: a(f"s_add_u32 s35, {off}, {noff(4*h)}")
            for n in range(4):
                assert noff(4*h+n)-n*1024>=0
                if not lin: a(f"s_add_u32 s35, {off}, {noff(4*h+n)-n*1024}")
                if win[0]>=W: a(f"s_waitcnt vmcnt({W-1})")
                win[0]+=1
                a(f"buffer_load_dwordx4 v{1+(n&1)}, s[{srd}:{srd+3}], s35 offen offset:{n*1024} {pol if srd==16 else polv} lds")
    if hs:
        assert kv and early and W>0
        cnt=[0]
        for (isv,i) in ((0,0),(1,0),(0,1),(1,1),(0,2)):
            a(f"s_mov_b32 s31, {i*SLOT}")
            half(isv, f"s{56+i}", "s31", cnt)
        a(f"""
        s_mov_b32 s34, s58
        s_mov_b32 s54, {2*SLOT}
        s_mov_b32 s31, {3*SLOT}
        """)
    for i in range(0 if hs else R-1):
        if early: a(f"s_mov_b32 s32, s{56+i}")
        elif xr:
            a(f"s_xor_b32 s32, s51, {i}")
            a(f"s_add_u32 s32, s32, s46")
        else: a(f"s_add_u32 s32, s46, {i}")
        if not early: tile_off()
        issue(i*16+16>W if W else False)
    a(f"s_mov_b32 s36, 0")
    a.label("L_lloop")
    if hs: a(f"s_waitcnt {'vmcnt(24) ' if W>24 else ''}lgkmcnt(0)      ; tile i has landed: at most 24 younger loads are in flight")
    else:
      a(f"""
    s_waitcnt vmcnt({(R-2)*16}) lgkmcnt(0)
    s_cmp_eq_u32 s36, s49
    s_cbranch_scc1 L_lend
    """)
    if lprof:
        a(f"""
        s_cmp_eq_u32 s36, {lprof-1}
        s_cbranch_scc0 L_lp
        s_memrealtime s[74:75]
        s_waitcnt lgkmcnt(0)
        """)
        a.label("L_lp")
    a("s_barrier")
    if cl4:
        assert hs and dyn and W<=24
        a(f"""
        s_cmp_lt_u32 s36, {NS-4}
        s_cbranch_scc1 L_noclaim4
        s_and_b32 s48, s36, 3
        s_lshl_b64 exec, 1, s48
        global_atomic_add v20, v23, v24, s[38:39] sc0
        s_mov_b64 exec, -1
        """)
        a.label("L_noclaim4")
    if hs: half(1, "s34", "s54", [W])
    a(f"""
    s_add_u32 s47, s36, {R-1}      ; n
    {'s_xor_b32 s32, s51, s47' if xr else 's_mov_b32 s32, s47'}
    s_add_u32 s32, s46, s32
    s_cmp_lt_u32 s47, {NS}
    s_cbranch_scc1 L_static
    """)
    if dyn:
        a(f"""
        s_and_b32 s48, s47, 3
        v_readlane_b32 s32, v20, s48
        s_nop 3
        s_add_u32 s32, s32, {4*NS}
        """)
    else:
        a(f"s_mov_b32 s32, {NTOT}")
    if kv:
        assert dyn and not nodma
        a(f"""
        s_cmp_lt_u32 s32, {NTOT}
        s_cbranch_scc0 L_lendgame
        """)
    else:
      a(f"""
    s_cmp_lt_u32 s32, {NTOT}
    s_cselect_b32 s18, 0x200000, 0
    s_cselect_b32 s22, 0x200000, 0
    s_cselect_b32 s48, s49, s47
    s_min_u32 s49, s49, s48
    v_mov_b32 v21, s49
    ds_write_b32 v22, v21
    """)
    a.label("L_static")
    tile_off()
    if hs:
        half(0, "s32", "s31", [W])
        a(f"""
        s_mov_b32 s34, s32
        s_mov_b32 s54, s31
        s_add_u32 s31, s31, {SLOT}
        s_and_b32 s31, s31, {R*SLOT-1}
        """)
    else: issue(True)
    a(f"""
    s_cmp_eq_u32 s36, {HSI}
    s_cbranch_scc0 L_nohs1
    global_load_dwordx2 v[26:27], v23, s[12:13] {xp}
    """)
    a.label("L_nohs1")
    a(f"""
    s_cmp_eq_u32 s36, {HSI+R-1}
    s_cbranch_scc0 L_nohs2
    s_mov_b32 s50, {spin}
    """)
    a.label("L_lhs")
    a(f"""
    v_readfirstlane_b32 s48, v26
    s_sub_u32 s50, s50, 1
    s_cmp_eq_u32 s50, 0
    s_cbranch_scc1 L_hsok
    s_cmp_lg_u32 s48, 0
    s_cbranch_scc1 L_hsok
    global_load_dwordx2 v[26:27], v23, s[12:13] {xp}
    s_waitcnt vmcnt(0)
    s_branch L_lhs
    """)
    a.label("L_hsok")
    a("ds_write_b64 v22, v[26:27] offset:8")
    a.label("L_nohs2")
    if dyn and not cl4:
        assert HSI+R-1 < NS-2*(R-1)
        a(f"""
        s_cmp_lt_u32 s36, {NS-2*(R-1)}
        s_cbranch_scc1 L_noclaim
        s_add_u32 s48, s36, {2*(R-1)}
        s_and_b32 s48, s48, 3
        s_lshl_b64 exec, 1, s48
        global_atomic_add v20, v23, v24, s[38:39] sc0
        s_mov_b64 exec, -1
        """)
        a.label("L_noclaim")
    a(f"""
    s_add_u32 s36, s36, 1
    s_branch L_lloop
    """)
    if kv:
        a.label("L_lendgame")
        a(f"""
        v_mov_b32 v21, s47
        ds_write_b32 v22, v21
        s_waitcnt vmcnt({17 if hs else 18}) lgkmcnt(0)
        s_barrier                      ; tile E-2
        s_waitcnt vmcnt(9)
        s_barrier
        s_waitcnt vmcnt({0 if hs else kvl})
        s_barrier
        """)
    a.label("L_lend")
    a("s_waitcnt vmcnt(0)")
    if lprof:
        a(f"""
        s_lshl_b32 s3, s2, 6
        s_add_u32 s14, s14, s3
        s_addc_u32 s15, s15, 0
        s_add_u32 s14, s14, {TS_OFF}
        s_addc_u32 s15, s15, 0
        v_mov_b32 v32, s72
        v_mov_b32 v33, s73
        v_mov_b32 v34, s74
        v_mov_b32 v35, s75
        v_mov_b32 v8, 0
        global_store_dwordx4 v8, v[32:35], s[14:15] offset:48
        s_waitcnt vmcnt(0)
        """)
    a("s_endpgm")

    a.label("L_comp")
    a(f"""
    v_and_b32 v4, 15, v3
    v_lshrrev_b32 v5, 4, v3       ; g
    s_lshl_b32 s27, s25, 2
    s_add_u32 s27, s27, s24       ; 4p+w
    s_lshl_b32 s28, s27, 12
    v_lshlrev_b32 v6, 8, v4
    v_lshl_add_u32 v7, v5, 4, v6    ; q*256+g*16
    s_waitcnt lgkmcnt(0)
    s_add_u32 s4, s4, s28
    s_addc_u32 s5, s5, 0
    """)
    for s in range(4):
        a(f"global_load_dwordx4 v[{Q0+4*s}:{Q0+4*s+3}], v7, s[4:5] offset:{64*s}")
    a(f"""
    s_or_b32 s30, s2, s24
    s_cmp_lg_u32 s30, 0
    s_cbranch_scc1 L_noclear
    s_memrealtime s[50:51]
    v_mov_b32 v8, 0
    v_mov_b32 v9, 0
    v_mov_b32 v10, 0
    v_mov_b32 v11, 0
    v_lshlrev_b32 v12, {csh}, v3
    global_store_dwordx4 v12, v[8:11], s[14:15] {xp}
    s_waitcnt vmcnt(0) lgkmcnt(0)
    s_or_b32 s50, s50, 1
    v_mov_b32 v14, s50
    v_mov_b32 v15, s51
    s_mov_b64 exec, 1
    global_store_dwordx2 v8, v[14:15], s[12:13] {xp}
    s_mov_b64 exec, -1
    """)
    a.label("L_noclear")
    a(f"""
    s_lshl_b32 s28, s27, 15        ; (4p+w)*32KiB
    s_add_u32 s40, s14, s28
    s_addc_u32 s41, s15, 0
    s_add_u32 s40, s40, {XB_OFF}
    s_addc_u32 s41, s41, 0
    s_lshl_b32 s28, s27, 12
    s_add_u32 s10, s10, s28
    s_addc_u32 s11, s11, 0
    v_lshlrev_b32 v7, 4, v3        ; lane*16
    v_lshlrev_b32 v6, 8, v4        ; q*256
    v_lshl_add_u32 v6, v5, 3, v6   ; + g*8
    s_lshl_b32 s28, s26, 6         ; 2j*32
    v_add_u32 v{OADR}, s28, v6
    s_lshl_b32 s28, s26, 8
    s_add_u32 s28, s28, {XB_ML}
    v_lshl_add_u32 v{MLO}, v4, 4, s28
    s_lshl_b32 s28, s26, 7
    s_add_u32 s28, s28, {XB_FL}
    v_mov_b32 v{FLO}, s28
    v_and_b32 v8, 3, v3
    v_lshlrev_b32 v8, 7, v8
    v_add_u32 v{FLP}, {XB_FL}, v8
    """)
    if chk:
        a(f"""
        v_and_b32 v8, 3, v3
        s_add_u32 s28, s26, 1
        v_add_u32 v8, s28, v8
        v_and_b32 v8, 3, v8
        v_lshrrev_b32 v9, 2, v3
        v_lshlrev_b32 v9, 3, v9        ; quad * 8
        s_lshl_b32 s28, s26, 7
        s_add_u32 s28, s28, {XB_CK}
        v_lshl_add_u32 v10, v8, 9, v9
        v_add_u32 v{FLO}, s28, v10
        s_lshl_b32 s28, s26, 9
        s_add_u32 s28, s28, {XB_CK}
        v_lshl_add_u32 v10, v8, 7, v9
        v_add_u32 v{FLP}, s28, v10
        s_mov_b32 s84, 0x11111111
        s_mov_b32 s85, 0x11111111
        s_mov_b32 s86, 0x22222222
        s_mov_b32 s87, 0x22222222
        s_mov_b32 s88, 0x77777777
        s_mov_b32 s89, 0x77777777
        """)
        for i,c in enumerate(CKC): a(f"s_mov_b32 s{76+i}, 0x{c:x}")
        a("s_mov_b32 s90, 4096          ; bound on the reload loop")
    for u in range(1,4):
        a(f"""
        s_add_u32 s28, s26, {u}
        s_and_b32 s28, s28, 3
        s_lshl_b32 s29, s28, 2
        s_add_u32 s29, s29, s26
        s_lshl_b32 s29, s29, 10
        v_add_u32 v{XAO+u-1}, s29, v7
        s_lshl_b32 s29, s26, 2
        s_add_u32 s29, s29, s28
        s_lshl_b32 s29, s29, 10
        v_add_u32 v{XAI+u-1}, s29, v7
        s_lshl_b32 s29, s28, 8
        s_add_u32 s29, s29, {XB_ML}
        v_lshl_add_u32 v{MLI+u-1}, v4, 4, s29
        """)
    a(f"""
    v_and_b32 v7, 7, v4
    v_lshlrev_b32 v7, 1, v7
    v_xor_b32 v7, v7, v5
    v_lshlrev_b32 v7, 4, v7
    v_lshl_add_u32 v{KA}, v4, 8, v7
    """)
    for s in range(1,4):
        a(f"v_xor_b32 v{KA+s}, {s<<6}, v{KA}")
    a(f"""
    v_lshrrev_b32 v7, 2, v4        ; r
    v_lshl_add_u32 v7, v5, 2, v7   ; key=4g+r
    v_and_b32 v14, 7, v7           ; k7
    v_and_b32 v15, 3, v3           ; c
    v_lshlrev_b32 v15, 3, v15      ; c*8
    v_lshl_add_u32 v15, v7, 8, v15 ; key*256 + c*8
    v_lshl_add_u32 v15, v14, 5, v15 ; + k7<<5      (db=0)
    s_lshl_b32 s30, s26, 1
    """)
    for t in range(8):
        a(f"s_add_u32 s34, s30, {t}")
        a(f"s_and_b32 s34, s34, 7")
        a(f"s_lshl_b32 s34, s34, 5")
        a(f"v_xor_b32 v{VB+t}, s34, v15")
    for i in range(32): a(f"v_mov_b32 v{O0+i}, 0")
    for i in range(4): a(f"v_mov_b32 v{L0+i}, 0")
    for i in range(4): a(f"v_mov_b32 v{ONE+i}, 0x3f803f80")
    for i in range(32): a(f"v_mov_b32 v{VA+32+i}, 0")
    for i in range(8): a(f"v_mov_b32 v{SS+8+i}, 0xff800000")
    a(f"""
    v_mov_b32 v{VM}, 0xff61b1e6
    v_mov_b32 v{VMC}, 0xff61b1e6
    v_mov_b32 v{VTH}, 0xff61b1e6
    v_mov_b32 v{VMAILA}, {MAIL}
    s_mov_b32 s37, 0x{C_SCALE:x}
    s_mov_b32 s44, 0x{fbits(THR/CF):x}
    s_mov_b32 s36, {1 if kv else 0}
    s_lshl_b32 s45, 1, s26
    s_waitcnt vmcnt(0)
    """)
    if cyc: stamp(6); a("s_waitcnt lgkmcnt(0)")

    def check(sb, lbl):
        S=SS+8*sb
        a(f"""
        v_max3_f32 v{T0}, v{S}, v{S+1}, v{S+2}
        v_max3_f32 v{T1}, v{S+3}, v{S+4}, v{S+5}
        v_max3_f32 v{T0}, v{T0}, v{S+6}, v{S+7}
        v_max_f32 v{T0}, v{T0}, v{T1}
        v_cmp_gt_f32 vcc, v{T0}, v{VTH}
        s_cbranch_vccnz L_rare{lbl}
        """)
        a.label(f"L_ret{lbl}")
    def softmax_B(sb):
        S=SS+8*sb
        for i in range(8): a(f"v_fma_f32 v{S+i}, v{S+i}, s37, -v{VMC}")
        for i in range(8): a(f"v_exp_f32 v{S+i}, v{S+i}")
        for i in range(4): a(f"v_cvt_pk_bf16_f32 v{P0+i}, v{S+2*i}, v{S+2*i+1}")
    def pv(vb, t):
        V=VA+32*vb
        a(f"v_mfma_f32_16x16x32_bf16 v[{O0+4*t}:{O0+4*t+3}], v[{V+4*t}:{V+4*t+3}], v[{P0}:{P0+3}], v[{O0+4*t}:{O0+4*t+3}]")
    def lsum():
        a(f"v_mfma_f32_16x16x32_bf16 v[{L0}:{L0+3}], v[{ONE}:{ONE+3}], v[{P0}:{P0+3}], v[{L0}:{L0+3}]")
    def rare(lbl):
        a.label(f"L_rare{lbl}")
        a(f"""
        v_max_f32 v{T0}, v{T0}, v{VM}
        v_mov_b32 v{T1}, v{T0}
        s_nop 1
        v_permlane16_swap_b32 v{T0}, v{T1}
        v_max_f32 v{T0}, v{T0}, v{T1}
        v_mov_b32 v{T1}, v{T0}
        s_nop 1
        v_permlane32_swap_b32 v{T0}, v{T1}
        v_max_f32 v{VM}, v{T0}, v{T1}
        v_mul_f32 v{T2}, s37, v{VM}
        v_add_f32 v{VTH}, s44, v{VM}
        v_sub_f32 v{T3}, v{VMC}, v{T2}
        v_exp_f32 v{T3}, v{T3}
        v_mov_b32 v{VMC}, v{T2}
        s_nop 0
        """)
        for i in range(4): a(f"v_mul_f32 v{L0+i}, v{T3}, v{L0+i}")
        for i in range(32): a(f"v_mul_f32 v{O0+i}, v{T3}, v{O0+i}")
        a(f"s_branch L_ret{lbl}")

    a.label("L_cloop")
    for r in range(R):
        cur=r&1; prev=cur^1
        base=r*SLOT
        S=SS+8*cur
        V=VA+32*cur
        if pre:
            assert kv and not prof and not touch and not nocomp
            def vread(t,hb):
                a(f"ds_read_b64_tr_b16 v[{V+4*t+2*hb}:{V+4*t+2*hb+1}], v{VB+t} offset:{base+8192+hb*4096}")
            def qk(kb,s):
                c = "0" if s==0 else f"v[{S+4*kb}:{S+4*kb+3}]"
                a(f"v_mfma_f32_16x16x32_bf16 v[{S+4*kb}:{S+4*kb+3}], v[{K0+16*kb+4*s}:{K0+16*kb+4*s+3}], v[{Q0+4*s}:{Q0+4*s+3}], {c}")
            check(prev, r)
            softmax_B(prev)
            a("s_nop 1")
            lsum()
            for t in range(8): pv(prev,t)
            a("s_barrier")
            a(f"ds_read_b32 v{VMAIL}, v{VMAILA}")
            for kb in range(2):
                for s in range(4):
                    a(f"ds_read_b128 v[{K0+16*kb+4*s}:{K0+16*kb+4*s+3}], v{KA+s} offset:{base+kb*4096}")
            vl=[(t,hb) for t in range(8) for hb in range(2)]
            for x in vl[:6]: vread(*x)
            a("s_waitcnt lgkmcnt(6)")
            for s in range(4):
                qk(0,s); qk(1,s)
                if s<3:
                    for x in vl[6+2*s:8+2*s]: vread(*x)
            a("s_waitcnt lgkmcnt(11)")
            for x in vl[12:]: vread(*x)
            a(f"s_add_u32 s36, s36, 1")
            a(f"s_waitcnt lgkmcnt(0)")
            a(f"v_cmp_eq_u32 vcc, s36, v{VMAIL}")
            a(f"s_cbranch_vccnz L_last{(r+1)%R}")
            continue
        a("s_barrier")
        if prof and r==0:
            for (it,sl) in ((4,3),(24,6),(44,7)):
                a(f"s_cmp_eq_u32 s36, {it}")
                a(f"s_cbranch_scc0 L_pr{sl}")
                a(f"s_memrealtime s[{60+2*sl}:{61+2*sl}]")
                a("s_waitcnt lgkmcnt(0)")
                a.label(f"L_pr{sl}")
        if r==0 and touch and not noepi:
            a(f"s_cmp_eq_u32 s36, {touch}")
            a("s_cbranch_scc1 L_touch")
            a.label("L_touchret")
        a(f"ds_read_b32 v{VMAIL}, v{VMAILA}")
        if not nocomp:
            for kb in range(2):
                for s in range(4):
                    a(f"ds_read_b128 v[{K0+16*kb+4*s}:{K0+16*kb+4*s+3}], v{KA+s} offset:{base+kb*4096}")
            check(prev, r)
            softmax_B(prev)
            def vread(t,hb):
                a(f"ds_read_b64_tr_b16 v[{V+4*t+2*hb}:{V+4*t+2*hb+1}], v{VB+t} offset:{base+8192+hb*4096}")
            def qk(kb,s):
                c = "0" if s==0 else f"v[{S+4*kb}:{S+4*kb+3}]"
                a(f"v_mfma_f32_16x16x32_bf16 v[{S+4*kb}:{S+4*kb+3}], v[{K0+16*kb+4*s}:{K0+16*kb+4*s+3}], v[{Q0+4*s}:{Q0+4*s+3}], {c}")
            vread(0,0); vread(0,1)
            lsum()
            vread(1,0); vread(1,1)
            pv(prev,0)
            vread(2,0); vread(2,1)
            pv(prev,1)
            a("s_waitcnt lgkmcnt(6)")
            for t in range(2,6):
                pv(prev,t); vread(t+1,0); vread(t+1,1)
            pv(prev,6)
            vread(7,0)
            pv(prev,7)
            a("s_waitcnt lgkmcnt(14)")
            vread(7,1)
            for s in range(4): qk(0,s); qk(1,s)
        a(f"s_add_u32 s36, s36, 1")
        a(f"s_waitcnt lgkmcnt(0)")
        a(f"v_cmp_eq_u32 vcc, s36, v{VMAIL}")
        a(f"s_cbranch_vccnz L_last{(r+1)%R}" if kv else f"s_cbranch_vccnz L_drain{cur}")
    a("s_branch L_cloop")
    if kv:
        assert not nocomp and not prof and not touch
        for r in range(R):
            cur=r&1; prev=cur^1; base=r*SLOT; S=SS+8*cur; V=VA+32*cur
            def vread(t,hb):
                a(f"ds_read_b64_tr_b16 v[{V+4*t+2*hb}:{V+4*t+2*hb+1}], v{VB+t} offset:{base+8192+hb*4096}")
            def qk(kb,s_):
                c = "0" if s_==0 else f"v[{S+4*kb}:{S+4*kb+3}]"
                a(f"v_mfma_f32_16x16x32_bf16 v[{S+4*kb}:{S+4*kb+3}], v[{K0+16*kb+4*s_}:{K0+16*kb+4*s_+3}], v[{Q0+4*s_}:{Q0+4*s_+3}], {c}")
            a.label(f"L_last{r}")
            if kvprof==1: a("s_memrealtime s[72:73]")
            a("s_barrier")
            if kvprof==1: a("s_memrealtime s[74:75]")
            for kb in range(2):
                for s_ in range(4):
                    a(f"ds_read_b128 v[{K0+16*kb+4*s_}:{K0+16*kb+4*s_+3}], v{KA+s_} offset:{base+kb*4096}")
            a(f"ds_read_b64 v[{VMAIL}:{VMAIL+1}], v{VMAILA} offset:8")
            check(prev, f"p{r}")
            softmax_B(prev)
            a("s_nop 1")
            lsum()
            for t in range(4): pv(prev,t)
            a("s_waitcnt lgkmcnt(0)")
            for s_ in range(4): qk(0,s_); qk(1,s_)
            for t in range(4,8): pv(prev,t)
            a("s_nop 3")
            check(cur, f"c{r}")
            softmax_B(cur)
            if kvprof==2: a("s_memrealtime s[72:73]")
            a("s_barrier")
            if kvprof==2: a("s_memrealtime s[74:75]")
            if kvprof==2: a("s_waitcnt lgkmcnt(0)")
            for t in range(2,8): vread(t,0); vread(t,1)
            lsum()
            a("s_waitcnt lgkmcnt(10)"); pv(cur,2); vread(0,0); vread(0,1)
            a("s_waitcnt lgkmcnt(10)"); pv(cur,3); vread(1,0); vread(1,1)
            def omax(t):
                o=O0+4*t
                if t==2:
                    a(f"v_max_f32 v{T0}, |v{o}|, |v{o+1}|")
                    a(f"v_max_f32 v{T1}, |v{o+2}|, |v{o+3}|")
                else:
                    a(f"v_max3_f32 v{T0}, v{T0}, |v{o}|, |v{o+1}|")
                    a(f"v_max3_f32 v{T1}, v{T1}, |v{o+2}|, |v{o+3}|")
            for (t,n,mx) in ((4,10,()),(5,8,(2,)),(6,6,(3,)),(7,4,(4,)),(0,2,(5,)),(1,0,(6,7))):
                a(f"s_waitcnt lgkmcnt({n})"); pv(cur,t)
                if trim:
                    for x in mx: omax(x)
            a("s_branch L_epi")
    if touch and not noepi:
        assert touch%R==0
        a.label("L_touch")
        if tmode==0:
            a(f"""
            s_mov_b64 exec, 1
            global_load_dword v{DUM}, v{FLO}, s[40:41]
            global_load_dword v{DUM}, v{OADR}, s[10:11]
            s_mov_b64 exec, -1
            s_branch L_touchret
            """)
        else:
            a(f"""
            s_mov_b64 exec, 15
            global_load_dword v{DUM}, v{FLP}, s[40:41] {tpol}
            s_mov_b64 exec, -1
            s_branch L_touchret
            """)
    for par in range(0 if kv else 2):
        a.label(f"L_drain{par}")
        a(f"ds_read_b64 v[{VMAIL}:{VMAIL+1}], v{VMAILA} offset:8")
        if not nocomp:
            a("s_nop 7")
            check(par, f"d{par}")
            softmax_B(par)
            a("s_nop 1")
            lsum()
            for t in (2,3,4,5,6,7,0,1): pv(par,t)
        a("s_branch L_epi")
    if not nocomp:
        for r in range(R): rare(r)
        if kv:
            for r in range(R): rare(f"p{r}"); rare(f"c{r}")
        else:
            rare("d0"); rare("d1")
    a.label("L_epi")
    stamp(1)
    if cyc: stamp(7)
    if not noepi:
        o=O0+8
        pregs=[76,78,80,82]
        def pcmp(rg):
            if chk: return f"v_cmp_eq_u32 vcc, v{rg+1}, v{VMAIL}"
            return f"v_cmp_eq_u64 vcc, v[{rg}:{rg+1}], v[{VMAIL}:{VMAIL+1}]"
        def pollins(rg):
            if pollop=='load': return f"global_load_dwordx2 v[{rg}:{rg+1}], v{FLP}, s[40:41] {xp}"
            return f"global_atomic_add_x2 v[{rg}:{rg+1}], v{FLP}, v[84:85], s[40:41] {pollop}"
        if pollop!='load':
            a("v_mov_b32 v84, 0")
            a("v_mov_b32 v85, 0")
        if not (trim and kv):
            a("s_nop 4")
            a(f"v_max3_f32 v{T0}, |v{o}|, |v{o+1}|, |v{o+2}|")
            a(f"v_max3_f32 v{T1}, |v{o+3}|, |v{o+4}|, |v{o+5}|")
            k=6; t=0
            while k<24:
                tr=(T0,T1)[t&1]
                a(f"v_max3_f32 v{tr}, v{tr}, |v{o+k}|, |v{o+k+1}|")
                k+=2; t+=1
        a(f"""
        v_max_f32 v{T0}, v{T0}, v{T1}
        v_mov_b32 v{GM}, v{VMC}
        v_mov_b32 v{T1}, v{T0}
        v_mov_b32 v{GM+1}, v{L0}
        s_nop 0
        v_permlane16_swap_b32 v{T0}, v{T1}
        v_max_f32 v{T0}, v{T0}, v{T1}
        v_mov_b32 v{T1}, v{T0}
        v_mov_b32 v{GM+3}, 0
        s_nop 0
        v_permlane32_swap_b32 v{T0}, v{T1}
        v_max_f32 v{T0}, v{T0}, v{T1}
        v_frexp_exp_i32_f32 v{T1}, v{T0}
        v_sub_u32 v{T1}, 15, v{T1}
        v_min_i32 v{GM+2}, 0x7e, v{T1}
        v_ldexp_f32 v12, 1.0, v{GM+2}
        """)
        CS=60; CU=[61,62,63]
        def dpp2():
            for (qp,pre) in (("[1,0,3,2]",True),("[2,3,0,1]",False)):
                a(f"v_add_u32_dpp v{CU[0]}, v{CU[0]}, v{CU[0]} quad_perm:{qp} row_mask:0xf bank_mask:0xf")
                a(f"v_add_u32_dpp v{CU[1]}, v{CU[1]}, v{CU[1]} quad_perm:{qp} row_mask:0xf bank_mask:0xf")
                if pre: a("s_nop 0")
                a(f"v_add_u32_dpp v{CU[2]}, v{CU[2]}, v{CU[2]} quad_perm:{qp} row_mask:0xf bank_mask:0xf")
        if chk:
            a(f"""
            s_mov_b64 exec, 0xffff
            global_store_dwordx4 v{MLO}, v[{GM}:{GM+3}], s[40:41] {xst}
            s_mov_b64 exec, -1
            s_waitcnt lgkmcnt(0)
            v_dot2_u32_u16 v{CS}, v{GM}, s80, v{VMAIL+1}
            v_dot2_u32_u16 v{CS}, v{GM+1}, s81, v{CS}
            v_dot2_u32_u16 v{CS}, v{GM+2}, s82, v{CS}
            """)
        for u in range(1,4):
            ob=O0+8*u; g=G0+4*(u-1)
            for i in range(4):
                a(f"v_pk_mul_f32 v[{ob+2*i}:{ob+2*i+1}], v[{ob+2*i}:{ob+2*i+1}], v[12:13] op_sel_hi:[1,0]")
            for i in range(4):
                a(f"v_cvt_pk_f16_f32 v{g+i}, v{ob+2*i}, v{ob+2*i+1}")
            if chk!=2: a(f"global_store_dwordx4 v{XAO+u-1}, v[{g}:{g+3}], s[40:41] {xst}")
            if chk:
                for i in range(4):
                    a(f"v_dot2_u32_u16 v{CU[u-1]}, v{g+i}, s{76+i}, v{CS if i==0 else CU[u-1]}")
        if chk:
            dpp2()
            a(f"""
            v_cndmask_b32 v14, v{CU[2]}, v{CU[1]}, s[86:87]
            v_mov_b32 v15, v{VMAIL}
            v_cndmask_b32 v14, v14, v{CU[0]}, s[84:85]
            s_mov_b64 exec, s[88:89]
            global_store_dwordx2 v{FLO}, v[14:15], s[40:41] {xst}
            """)
            if chk==2:
                a("s_mov_b64 exec, -1")
                for u in range(1,4):
                    g=G0+4*(u-1)
                    a(f"global_store_dwordx4 v{XAO+u-1}, v[{g}:{g+3}], s[40:41] {xst}")
        else:
          a(f"""
        s_mov_b64 exec, 0xffff
        global_store_dwordx4 v{MLO}, v[{GM}:{GM+3}], s[40:41] {xst}
        s_mov_b64 exec, 1
        s_waitcnt vmcnt(0) lgkmcnt(0)
        {f"global_store_dwordx2 v{FLO}, v[{VMAIL}:{VMAIL+1}], s[40:41] {xst}" if flop=='store' else f"global_atomic_swap_x2 v{FLO}, v[{VMAIL}:{VMAIL+1}], s[40:41] {flop}"}
        """)
        stamp(2)
        a(f"""
        {'s_mov_b32 s46, 7' if chk else 's_andn2_b32 s46, 15, s45'}
        s_mov_b32 s47, 0
        s_mov_b64 exec, s[46:47]
        s_mov_b32 s36, {spin}
        """)
        if npoll==1:
            a("s_branch L_poll0")
            a.label("L_poll")
            if psleep: a(f"s_sleep {psleep}")
            a.label("L_poll0")
            a(f"""
            {pollins(pregs[0])}
            s_sub_u32 s36, s36, 1
            s_cmp_eq_u32 s36, 0
            s_cbranch_scc1 L_poll_ok
            s_waitcnt vmcnt(0)
            {pcmp(pregs[0])}
            s_cmp_eq_u32 vcc_lo, s46
            s_cbranch_scc0 L_poll
            """)
        else:
            regs=pregs[:npoll]
            for i,rg in enumerate(regs):
                a(pollins(rg))
                if i<npoll-1: a(f"s_sleep {psleep}")
            a.label("L_poll")
            for i,rg in enumerate(regs):
                a(f"""
                s_waitcnt vmcnt({npoll-1})
                {pcmp(rg)}
                s_cmp_eq_u32 vcc_lo, s46
                s_cbranch_scc1 L_poll_ok
                {pollins(rg)}
                """)
            a(f"""
            s_sub_u32 s36, s36, 1
            s_cmp_eq_u32 s36, 0
            s_cbranch_scc0 L_poll
            """)
        a.label("L_poll_ok")
        a("s_mov_b64 exec, -1")
        stamp(3)
        if pwait: a("s_waitcnt vmcnt(0)")
        AC=88
        if chk: a.label("L_reload")
        for u in range(1,4):
            a(f"global_load_dwordx4 v[{XML+4*(u-1)}:{XML+4*(u-1)+3}], v{MLI+u-1}, s[40:41] {xp}")
        for u in range(1,4):
            a(f"global_load_dwordx4 v[{X0+4*(u-1)}:{X0+4*(u-1)+3}], v{XAI+u-1}, s[40:41] {xp}")
        nl=3
        if chk:
            a(f"""
            s_mov_b64 exec, s[88:89]
            global_load_dwordx2 v[86:87], v{FLP}, s[40:41] {xp}
            s_mov_b64 exec, -1
            """)
            nl=4
        a(f"s_waitcnt vmcnt({nl})")
        m=[VMC, XML, XML+4, XML+8]
        l=[L0, XML+1, XML+5, XML+9]
        kk=[None, XML+2, XML+6, XML+10]
        if chk:
            for u in range(1,4):
                a(f"v_dot2_u32_u16 v{CU[u-1]}, v{m[u]}, s80, v{VMAIL+1}")
            for u in range(1,4):
                a(f"v_dot2_u32_u16 v{CU[u-1]}, v{l[u]}, s81, v{CU[u-1]}")
            for u in range(1,4):
                a(f"v_dot2_u32_u16 v{CU[u-1]}, v{kk[u]}, s82, v{CU[u-1]}")
        a(f"""
        v_max3_f32 v{T0}, v{m[0]}, v{m[1]}, v{m[2]}
        v_max_f32 v{T0}, v{T0}, v{m[3]}
        v_sub_f32 v12, v{m[0]}, v{T0}
        v_sub_f32 v13, v{m[1]}, v{T0}
        v_sub_f32 v14, v{m[2]}, v{T0}
        v_sub_f32 v15, v{m[3]}, v{T0}
        v_exp_f32 v12, v12
        v_exp_f32 v13, v13
        v_exp_f32 v14, v14
        v_exp_f32 v15, v15
        v_sub_u32 v{kk[1]}, 0, v{kk[1]}
        v_sub_u32 v{kk[2]}, 0, v{kk[2]}
        v_sub_u32 v{kk[3]}, 0, v{kk[3]}
        v_mul_f32 v{T1}, v{l[0]}, v12
        v_fmac_f32 v{T1}, v{l[1]}, v13
        v_fmac_f32 v{T1}, v{l[2]}, v14
        v_fmac_f32 v{T1}, v{l[3]}, v15
        v_rcp_f32 v{T3}, v{T1}
        v_ldexp_f32 v13, v13, v{kk[1]}
        v_ldexp_f32 v14, v14, v{kk[2]}
        v_ldexp_f32 v15, v15, v{kk[3]}
        """)
        if trim:
            a(f"""
            v_fma_f32 v{T2}, -v{T1}, v{T3}, 1.0
            v_fmac_f32 v{T3}, v{T3}, v{T2}
            v_mul_f32 v12, v12, v{T3}
            v_mul_f32 v13, v13, v{T3}
            v_mul_f32 v14, v14, v{T3}
            v_mul_f32 v15, v15, v{T3}
            """)
            for i in range(8):
                a(f"v_mul_f32 v{AC+i}, v{O0+i}, v12")
        else:
            for i in range(8):
                a(f"v_mul_f32 v{AC+i}, v{O0+i}, v12")
            a(f"""
        v_fma_f32 v{T2}, -v{T1}, v{T3}, 1.0
        v_fmac_f32 v{T3}, v{T3}, v{T2}
        """)
        a("s_waitcnt vmcnt(0)")
        stamp(4)
        def mix(u):
            for i in range(8):
                a(f"v_fma_mix_f32 v{AC+i}, v{X0+4*(u-1)+i//2}, v{12+u}, v{AC+i} op_sel:[{i&1},0,0] op_sel_hi:[1,0,0]")
        if chk:
            for i in range(4):
                for u in range(1,4):
                    a(f"v_dot2_u32_u16 v{CU[u-1]}, v{X0+4*(u-1)+i}, s{76+i}, v{CU[u-1]}")
            mix(1)
            for u in range(3): a(f"v_add_u32_dpp v{CU[u]}, v{CU[u]}, v{CU[u]} quad_perm:[1,0,3,2] row_mask:0xf bank_mask:0xf")
            mix(2)
            for u in range(3): a(f"v_add_u32_dpp v{CU[u]}, v{CU[u]}, v{CU[u]} quad_perm:[2,3,0,1] row_mask:0xf bank_mask:0xf")
            mix(3)
            a(f"""
            v_cndmask_b32 v{T0}, v{CU[2]}, v{CU[1]}, s[86:87]
            v_cndmask_b32 v{T0}, v{T0}, v{CU[0]}, s[84:85]
            v_cmp_ne_u32 vcc, v{T0}, v86
            s_and_b64 vcc, vcc, s[88:89]
            s_cbranch_scc0 L_verified
            s_sub_u32 s90, s90, 1
            s_cmp_eq_u32 s90, 0
            s_cbranch_scc0 L_reload
            """)
            a.label("L_verified")
        else:
            for u in range(1,4): mix(u)
        if not trim:
            for i in range(8):
                a(f"v_mul_f32 v{O0+i}, v{AC+i}, v{T3}")
        FO = AC if trim else O0
        a(f"""
        v_cvt_pk_bf16_f32 v12, v{FO}, v{FO+1}
        v_cvt_pk_bf16_f32 v13, v{FO+2}, v{FO+3}
        v_cvt_pk_bf16_f32 v14, v{FO+4}, v{FO+5}
        v_cvt_pk_bf16_f32 v15, v{FO+6}, v{FO+7}
        global_store_dwordx2 v{OADR}, v[12:13], s[10:11] {opol}
        global_store_dwordx2 v{OADR}, v[14:15], s[10:11] offset:32 {opol}
        """)
    if ts:
        a("s_waitcnt vmcnt(0)")
        a("v_mov_b32 v8, 0")
        stamp(5)
        a(f"""
        s_waitcnt lgkmcnt(0)
        s_cmp_lg_u32 s24, 0
        s_cbranch_scc1 L_done
        s_lshl_b32 s3, s2, 6
        s_add_u32 s14, s14, s3
        s_addc_u32 s15, s15, 0
        s_add_u32 s14, s14, {TS_OFF}
        s_addc_u32 s15, s15, 0
        """)
        if cyc:
            a("s_sub_u32 s72, s74, s72")
            a("s_mov_b32 s73, 0")
        elif not prof and not kvprof:
            a("s_mov_b32 s72, s90" if chk else "s_mov_b32 s72, s36")
            a("s_mov_b32 s73, 0")
        if not prof and not kvprof:
            a("s_mov_b32 s74, 0")
            a("s_mov_b32 s75, 0")
        for i in range(0,6 if lprof else 8,2):
            a(f"""
            v_mov_b32 v{32+2*i}, s{60+2*i}
            v_mov_b32 v{33+2*i}, s{61+2*i}
            v_mov_b32 v{34+2*i}, s{62+2*i}
            v_mov_b32 v{35+2*i}, s{63+2*i}
            global_store_dwordx4 v8, v[{32+2*i}:{35+2*i}], s[14:15] offset:{8*i}
            """)
    a.label("L_done")
    a("s_endpgm")
    txt=HDR+f"; @launch grid=(256,1,1) block=(320,1,1) lds={lds}\n"+'.amdgcn_target "amdgcn-amd-amdhsa--gfx950"\n.text\n'+kernel_head(NAME)+a.text()+'.section .rodata,"a"\n.p2align 6\n'+kernel_desc(NAME,nv or NVGPR)
    return txt

if __name__=='__main__':
    import ast
    out=sys.argv[1]
    kw={}
    for x in sys.argv[2:]:
        k,v=x.split('=')
        try: v=ast.literal_eval(v)
        except Exception: pass
        kw[k]=v
    open(out,'w').write(gen(**kw))
```

```python
import sys, struct
from asmlib import *

NAME='standalone__gqa_softmax__sampling_kernel'
def fbits(x): return struct.unpack('<I',struct.pack('<f',x))[0]
CF = 0.08838834764831845*1.4426950408889634
C_SCALE = fbits(CF)

Q0=16
K0=32
VA=64
SS=128
P0=144
O0=148
L0=180
ONE=184
KA=188
VB=192
VM=200; VMC=201; VTH=202
T0=203; T1=204; T2=205; T3=206
VMAILA=207; VMAIL=208
XAO=210
XAI=213
OADR=216
MLO=217
MLI=218
FLO=221
FLP=222
DUM=223
NVGPR=224
X0=32
G0=44
GM=56
XML=64

XB_OFF=1<<20
XB_ML=16384
XB_FL=16384+1024
XB_CK=16384+2048
CKC=[0x9e3579b1,0x85eb4a6b,0xc2b3ae35,0x27d52f2f,0x165767b1,0xd3a3646d,0xfd71c5a7]
TS_OFF=480<<20
R=4
SLOT=16384
MAIL=R*SLOT

def gen(W=24, pol='nt', polv=None, mapping=1, ts=False, spin=1<<16, cyc=False, THR=8.0, lprio=0,
        nodma=False, nocomp=False, NS=48, dyn=True, psleep=1, HSI=None, noepi=False, opol='', csh=10,
        touch=8, flip=0, xcc=False, trim=False, cl4=False, pre=False, hs=False, kv=False, kvl=1, kvprof=0, lw0=False, early=False, chk=False, pwait=None, pollop='load', flop='store', tmode=0, tpol='sc1', xp='sc1', xst='sc1', prof=False, lprof=0, nv=None, npoll=1, xr=None, gx=None, pat='r0 r1 t0 t1 n0 n1 n2 t2 t3 t4 t5 t6 t7'):
    if polv is None: polv=pol
    toks=pat.split(); assert sorted(toks)==sorted(['r0','r1','n0','n1','n2']+[f't{i}' for i in range(8)])
    pos={x:8+i for i,x in enumerate(toks)}
    def noff(n): return sum(((n>>b)&1)<<pos[f'n{b}'] for b in range(3))
    runs=[]
    for b in range(8):
        if runs and runs[-1][0]+runs[-1][1]==b and runs[-1][2]+runs[-1][1]==pos[f't{b}']:
            runs[-1]=(runs[-1][0],runs[-1][1]+1,runs[-1][2])
        else: runs.append((b,1,pos[f't{b}']))
    a=A()
    lds=MAIL+16384+128
    NTOT=256
    if not dyn: NS=64
    if HSI is None: HSI=NS-12
    if xr: assert NS%(xr[1]+1)==0
    def stamp(i):
        if ts:
            a(f"{'s_memtime' if (cyc and i in (6,7)) else 's_memrealtime'} s[{60+2*i}:{61+2*i}]")
    a(f"""
    s_cmp_ge_u32 s2, 256
    s_cbranch_scc1 L_done
    s_load_dwordx4 s[4:7], s[0:1], 0
    s_load_dwordx4 s[8:11], s[0:1], 16
    s_load_dwordx4 s[12:15], s[0:1], 32
    """)
    stamp(0)
    a("""
    v_lshrrev_b32 v2, 6, v0
    v_and_b32 v3, 63, v0
    v_readfirstlane_b32 s24, v2
    """)
    if mapping==0:
        a("""
        s_lshr_b32 s25, s2, 5
        s_lshl_b32 s25, s25, 3
        s_and_b32 s26, s2, 7
        s_or_b32 s25, s25, s26
        s_lshr_b32 s26, s2, 3
        s_and_b32 s26, s26, 3
        """)
    elif mapping==1:
        a("""
        s_lshr_b32 s25, s2, 2
        s_and_b32 s26, s2, 3
        """)
    elif mapping==2:
        a("""
        s_and_b32 s26, s2, 7
        s_lshr_b32 s27, s26, 1
        s_xor_b32 s26, s26, s27
        s_and_b32 s26, s26, 1
        s_lshr_b32 s25, s2, 3
        s_lshl_b32 s25, s25, 1
        s_or_b32 s25, s25, s26
        s_mov_b32 s26, s27
        """)
    elif mapping==3:
        a("""
        s_and_b32 s26, s2, 1
        s_lshr_b32 s25, s2, 3
        s_lshl_b32 s25, s25, 1
        s_or_b32 s25, s25, s26
        s_lshr_b32 s26, s2, 1
        s_and_b32 s26, s26, 3
        """)
    if flip: a(f"s_xor_b32 s25, s25, {flip}")
    if lw0:
        a("""
        s_cmp_lg_u32 s24, 0
        s_cbranch_scc0 L_load
        s_sub_u32 s24, s24, 1
        s_branch L_comp
        """)
        a.label("L_load")
    else:
        a(f"""
        s_cmp_lt_u32 s24, 4
        s_cbranch_scc1 L_comp
        """)
    if lprio: a(f"s_setprio {lprio}")
    a(f"""
    s_lshl_b32 s29, s25, 21
    v_lshrrev_b32 v4, 4, v3      ; rr
    v_and_b32 v5, 15, v3         ; c'
    v_lshlrev_b32 v6, 1, v4      ; f = rr<<1
    v_xor_b32 v5, v5, v6
    v_lshlrev_b32 v5, 4, v5
    v_and_b32 v6, 1, v4
    v_lshl_add_u32 v5, v6, {pos['r0']}, v5
    v_lshrrev_b32 v6, 1, v4
    v_lshl_add_u32 v1, v6, {pos['r1']}, v5
    v_xor_b32 v2, 0x80, v1
    s_mov_b32 s31, 0
    s_mul_i32 s46, s26, {NS}
    {f's_bfe_u32 s51, s2, 0x{((xr[1].bit_length())<<16)|xr[0]:x}' if xr else ''}
    s_mov_b32 s49, 0x7fffffff    ; E
    s_mov_b32 s55, 0
    v_mov_b32 v21, s49
    v_mov_b32 v22, {MAIL}
    v_mov_b32 v23, 0
    v_mov_b32 v24, 1
    v_mov_b32 v20, 0
    ds_write_b32 v22, v21
    """)
    for (sh,mk,ls) in (gx or []):
        a(f"""
        s_lshr_b32 s52, s25, {sh}
        s_and_b32 s52, s52, {mk}
        s_lshl_b32 s52, s52, {ls}
        s_xor_b32 s55, s55, s52
        """)
    def tile_off():
        if gx: a("s_xor_b32 s32, s32, s55")
        if len(runs)==1:
            a(f"s_lshl_b32 s32, s32, {runs[0][2]}")
        else:
            for i,(b,ln,ab) in enumerate(runs):
                d = "s52" if i==0 else "s53"
                a(f"s_bfe_u32 {d}, s32, 0x{(ln<<16)|b:x}")
                a(f"s_lshl_b32 {d}, {d}, {ab}")
                if i: a("s_add_u32 s52, s52, s53")
            a("s_mov_b32 s32, s52")
    if early:
        assert not xr
        for i in range(R-1):
            a(f"s_add_u32 s32, s46, {i}")
            tile_off()
            a(f"s_mov_b32 s{56+i}, s32")
        a("s_mov_b32 s18, 0x200000")
        a("s_mov_b32 s19, 0x20000")
        a("s_mov_b32 s22, 0x200000")
        a("s_mov_b32 s23, 0x20000")
    a(f"""
    s_waitcnt lgkmcnt(0)
    {'s_memrealtime s[72:73]' if lprof else ''}
    s_add_u32 s16, s6, s29
    s_addc_u32 s17, s7, 0
    {'' if early else 's_mov_b32 s18, 0x200000'}
    {'' if early else 's_mov_b32 s19, 0x20000'}
    s_add_u32 s20, s8, s29
    s_addc_u32 s21, s9, 0
    {'' if early else 's_mov_b32 s22, 0x200000'}
    {'' if early else 's_mov_b32 s23, 0x20000'}
    s_lshl_b32 s30, s25, {csh}
    s_add_u32 s38, s14, s30
    s_addc_u32 s39, s15, 0
    """)
    def issue(win):
        if not nodma:
            for (srd,lo) in [(16,0),(20,8192)]:
                for h in range(2):
                    a(f"s_add_u32 s33, s31, {lo+h*4096}")
                    a(f"s_mov_b32 m0, s33")
                    lin = all(noff(4*h+n)==noff(4*h)+n*1024 for n in range(4))
                    if lin: a(f"s_add_u32 s35, s32, {noff(4*h)}")
                    for n in range(4):
                        assert noff(4*h+n)-n*1024>=0
                        if not lin: a(f"s_add_u32 s35, s32, {noff(4*h+n)-n*1024}")
                        if win and W: a(f"s_waitcnt vmcnt({W-1})")
                        a(f"buffer_load_dwordx4 v{1+(n&1)}, s[{srd}:{srd+3}], s35 offen offset:{n*1024} {pol if srd==16 else polv} lds")
        a(f"s_add_u32 s31, s31, {SLOT}")
        a(f"s_and_b32 s31, s31, {R*SLOT-1}")
    def half(isv, off, slot, win):
        srd,lo = (20,8192) if isv else (16,0)
        for h in range(2):
            a(f"s_add_u32 s33, {slot}, {lo+h*4096}")
            a(f"s_mov_b32 m0, s33")
            lin = all(noff(4*h+n)==noff(4*h)+n*1024 for n in range(4))
            if lin: a(f"s_add_u32 s35, {off}, {noff(4*h)}")
            for n in range(4):
                assert noff(4*h+n)-n*1024>=0
                if not lin: a(f"s_add_u32 s35, {off}, {noff(4*h+n)-n*1024}")
                if win[0]>=W: a(f"s_waitcnt vmcnt({W-1})")
                win[0]+=1
                a(f"buffer_load_dwordx4 v{1+(n&1)}, s[{srd}:{srd+3}], s35 offen offset:{n*1024} {pol if srd==16 else polv} lds")
    if hs:
        assert kv and early and W>0
        cnt=[0]
        for (isv,i) in ((0,0),(1,0),(0,1),(1,1),(0,2)):
            a(f"s_mov_b32 s31, {i*SLOT}")
            half(isv, f"s{56+i}", "s31", cnt)
        a(f"""
        s_mov_b32 s34, s58
        s_mov_b32 s54, {2*SLOT}
        s_mov_b32 s31, {3*SLOT}
        """)
    for i in range(0 if hs else R-1):
        if early: a(f"s_mov_b32 s32, s{56+i}")
        elif xr:
            a(f"s_xor_b32 s32, s51, {i}")
            a(f"s_add_u32 s32, s32, s46")
        else: a(f"s_add_u32 s32, s46, {i}")
        if not early: tile_off()
        issue(i*16+16>W if W else False)
    a(f"s_mov_b32 s36, 0")
    a.label("L_lloop")
    if hs: a(f"s_waitcnt {'vmcnt(24) ' if W>24 else ''}lgkmcnt(0)      ; tile i has landed: at most 24 younger loads are in flight")
    else:
      a(f"""
    s_waitcnt vmcnt({(R-2)*16}) lgkmcnt(0)
    s_cmp_eq_u32 s36, s49
    s_cbranch_scc1 L_lend
    """)
    if lprof:
        a(f"""
        s_cmp_eq_u32 s36, {lprof-1}
        s_cbranch_scc0 L_lp
        s_memrealtime s[74:75]
        s_waitcnt lgkmcnt(0)
        """)
        a.label("L_lp")
    a("s_barrier")
    if cl4:
        assert hs and dyn and W<=24
        a(f"""
        s_cmp_lt_u32 s36, {NS-4}
        s_cbranch_scc1 L_noclaim4
        s_and_b32 s48, s36, 3
        s_lshl_b64 exec, 1, s48
        global_atomic_add v20, v23, v24, s[38:39] sc0
        s_mov_b64 exec, -1
        """)
        a.label("L_noclaim4")
    if hs: half(1, "s34", "s54", [W])
    a(f"""
    s_add_u32 s47, s36, {R-1}      ; n
    {'s_xor_b32 s32, s51, s47' if xr else 's_mov_b32 s32, s47'}
    s_add_u32 s32, s46, s32
    s_cmp_lt_u32 s47, {NS}
    s_cbranch_scc1 L_static
    """)
    if dyn:
        a(f"""
        s_and_b32 s48, s47, 3
        v_readlane_b32 s32, v20, s48
        s_nop 3
        s_add_u32 s32, s32, {4*NS}
        """)
    else:
        a(f"s_mov_b32 s32, {NTOT}")
    if kv:
        assert dyn and not nodma
        a(f"""
        s_cmp_lt_u32 s32, {NTOT}
        s_cbranch_scc0 L_lendgame
        """)
    else:
      a(f"""
    s_cmp_lt_u32 s32, {NTOT}
    s_cselect_b32 s18, 0x200000, 0
    s_cselect_b32 s22, 0x200000, 0
    s_cselect_b32 s48, s49, s47
    s_min_u32 s49, s49, s48
    v_mov_b32 v21, s49
    ds_write_b32 v22, v21
    """)
    a.label("L_static")
    tile_off()
    if hs:
        half(0, "s32", "s31", [W])
        a(f"""
        s_mov_b32 s34, s32
        s_mov_b32 s54, s31
        s_add_u32 s31, s31, {SLOT}
        s_and_b32 s31, s31, {R*SLOT-1}
        """)
    else: issue(True)
    a(f"""
    s_cmp_eq_u32 s36, {HSI}
    s_cbranch_scc0 L_nohs1
    global_load_dwordx2 v[26:27], v23, s[12:13] {xp}
    """)
    a.label("L_nohs1")
    a(f"""
    s_cmp_eq_u32 s36, {HSI+R-1}
    s_cbranch_scc0 L_nohs2
    s_mov_b32 s50, {spin}
    """)
    a.label("L_lhs")
    a(f"""
    v_readfirstlane_b32 s48, v26
    s_sub_u32 s50, s50, 1
    s_cmp_eq_u32 s50, 0
    s_cbranch_scc1 L_hsok
    s_cmp_lg_u32 s48, 0
    s_cbranch_scc1 L_hsok
    global_load_dwordx2 v[26:27], v23, s[12:13] {xp}
    s_waitcnt vmcnt(0)
    s_branch L_lhs
    """)
    a.label("L_hsok")
    a("ds_write_b64 v22, v[26:27] offset:8")
    a.label("L_nohs2")
    if dyn and not cl4:
        assert HSI+R-1 < NS-2*(R-1)
        a(f"""
        s_cmp_lt_u32 s36, {NS-2*(R-1)}
        s_cbranch_scc1 L_noclaim
        s_add_u32 s48, s36, {2*(R-1)}
        s_and_b32 s48, s48, 3
        s_lshl_b64 exec, 1, s48
        global_atomic_add v20, v23, v24, s[38:39] sc0
        s_mov_b64 exec, -1
        """)
        a.label("L_noclaim")
    a(f"""
    s_add_u32 s36, s36, 1
    s_branch L_lloop
    """)
    if kv:
        a.label("L_lendgame")
        a(f"""
        v_mov_b32 v21, s47
        ds_write_b32 v22, v21
        s_waitcnt vmcnt({17 if hs else 18}) lgkmcnt(0)
        s_barrier                      ; tile E-2
        s_waitcnt vmcnt(9)
        s_barrier
        s_waitcnt vmcnt({0 if hs else kvl})
        s_barrier
        """)
    a.label("L_lend")
    a("s_waitcnt vmcnt(0)")
    if lprof:
        a(f"""
        s_lshl_b32 s3, s2, 6
        s_add_u32 s14, s14, s3
        s_addc_u32 s15, s15, 0
        s_add_u32 s14, s14, {TS_OFF}
        s_addc_u32 s15, s15, 0
        v_mov_b32 v32, s72
        v_mov_b32 v33, s73
        v_mov_b32 v34, s74
        v_mov_b32 v35, s75
        v_mov_b32 v8, 0
        global_store_dwordx4 v8, v[32:35], s[14:15] offset:48
        s_waitcnt vmcnt(0)
        """)
    a("s_endpgm")

    a.label("L_comp")
    a(f"""
    v_and_b32 v4, 15, v3
    v_lshrrev_b32 v5, 4, v3       ; g
    s_lshl_b32 s27, s25, 2
    s_add_u32 s27, s27, s24       ; 4p+w
    s_lshl_b32 s28, s27, 12
    v_lshlrev_b32 v6, 8, v4
    v_lshl_add_u32 v7, v5, 4, v6    ; q*256+g*16
    s_waitcnt lgkmcnt(0)
    s_add_u32 s4, s4, s28
    s_addc_u32 s5, s5, 0
    """)
    for s in range(4):
        a(f"global_load_dwordx4 v[{Q0+4*s}:{Q0+4*s+3}], v7, s[4:5] offset:{64*s}")
    a(f"""
    s_or_b32 s30, s2, s24
    s_cmp_lg_u32 s30, 0
    s_cbranch_scc1 L_noclear
    s_memrealtime s[50:51]
    v_mov_b32 v8, 0
    v_mov_b32 v9, 0
    v_mov_b32 v10, 0
    v_mov_b32 v11, 0
    v_lshlrev_b32 v12, {csh}, v3
    global_store_dwordx4 v12, v[8:11], s[14:15] {xp}
    s_waitcnt vmcnt(0) lgkmcnt(0)
    s_or_b32 s50, s50, 1
    v_mov_b32 v14, s50
    v_mov_b32 v15, s51
    s_mov_b64 exec, 1
    global_store_dwordx2 v8, v[14:15], s[12:13] {xp}
    s_mov_b64 exec, -1
    """)
    a.label("L_noclear")
    a(f"""
    s_lshl_b32 s28, s27, 15        ; (4p+w)*32KiB
    s_add_u32 s40, s14, s28
    s_addc_u32 s41, s15, 0
    s_add_u32 s40, s40, {XB_OFF}
    s_addc_u32 s41, s41, 0
    s_lshl_b32 s28, s27, 12
    s_add_u32 s10, s10, s28
    s_addc_u32 s11, s11, 0
    v_lshlrev_b32 v7, 4, v3        ; lane*16
    v_lshlrev_b32 v6, 8, v4        ; q*256
    v_lshl_add_u32 v6, v5, 3, v6   ; + g*8
    s_lshl_b32 s28, s26, 6         ; 2j*32
    v_add_u32 v{OADR}, s28, v6
    s_lshl_b32 s28, s26, 8
    s_add_u32 s28, s28, {XB_ML}
    v_lshl_add_u32 v{MLO}, v4, 4, s28
    s_lshl_b32 s28, s26, 7
    s_add_u32 s28, s28, {XB_FL}
    v_mov_b32 v{FLO}, s28
    v_and_b32 v8, 3, v3
    v_lshlrev_b32 v8, 7, v8
    v_add_u32 v{FLP}, {XB_FL}, v8
    """)
    if chk:
        a(f"""
        v_and_b32 v8, 3, v3
        s_add_u32 s28, s26, 1
        v_add_u32 v8, s28, v8
        v_and_b32 v8, 3, v8
        v_lshrrev_b32 v9, 2, v3
        v_lshlrev_b32 v9, 3, v9        ; quad * 8
        s_lshl_b32 s28, s26, 7
        s_add_u32 s28, s28, {XB_CK}
        v_lshl_add_u32 v10, v8, 9, v9
        v_add_u32 v{FLO}, s28, v10
        s_lshl_b32 s28, s26, 9
        s_add_u32 s28, s28, {XB_CK}
        v_lshl_add_u32 v10, v8, 7, v9
        v_add_u32 v{FLP}, s28, v10
        s_mov_b32 s84, 0x11111111
        s_mov_b32 s85, 0x11111111
        s_mov_b32 s86, 0x22222222
        s_mov_b32 s87, 0x22222222
        s_mov_b32 s88, 0x77777777
        s_mov_b32 s89, 0x77777777
        """)
        for i,c in enumerate(CKC): a(f"s_mov_b32 s{76+i}, 0x{c:x}")
        a("s_mov_b32 s90, 4096          ; bound on the reload loop")
    for u in range(1,4):
        a(f"""
        s_add_u32 s28, s26, {u}
        s_and_b32 s28, s28, 3
        s_lshl_b32 s29, s28, 2
        s_add_u32 s29, s29, s26
        s_lshl_b32 s29, s29, 10
        v_add_u32 v{XAO+u-1}, s29, v7
        s_lshl_b32 s29, s26, 2
        s_add_u32 s29, s29, s28
        s_lshl_b32 s29, s29, 10
        v_add_u32 v{XAI+u-1}, s29, v7
        s_lshl_b32 s29, s28, 8
        s_add_u32 s29, s29, {XB_ML}
        v_lshl_add_u32 v{MLI+u-1}, v4, 4, s29
        """)
    a(f"""
    v_and_b32 v7, 7, v4
    v_lshlrev_b32 v7, 1, v7
    v_xor_b32 v7, v7, v5
    v_lshlrev_b32 v7, 4, v7
    v_lshl_add_u32 v{KA}, v4, 8, v7
    """)
    for s in range(1,4):
        a(f"v_xor_b32 v{KA+s}, {s<<6}, v{KA}")
    a(f"""
    v_lshrrev_b32 v7, 2, v4        ; r
    v_lshl_add_u32 v7, v5, 2, v7   ; key=4g+r
    v_and_b32 v14, 7, v7           ; k7
    v_and_b32 v15, 3, v3           ; c
    v_lshlrev_b32 v15, 3, v15      ; c*8
    v_lshl_add_u32 v15, v7, 8, v15 ; key*256 + c*8
    v_lshl_add_u32 v15, v14, 5, v15 ; + k7<<5      (db=0)
    s_lshl_b32 s30, s26, 1
    """)
    for t in range(8):
        a(f"s_add_u32 s34, s30, {t}")
        a(f"s_and_b32 s34, s34, 7")
        a(f"s_lshl_b32 s34, s34, 5")
        a(f"v_xor_b32 v{VB+t}, s34, v15")
    for i in range(32): a(f"v_mov_b32 v{O0+i}, 0")
    for i in range(4): a(f"v_mov_b32 v{L0+i}, 0")
    for i in range(4): a(f"v_mov_b32 v{ONE+i}, 0x3f803f80")
    for i in range(32): a(f"v_mov_b32 v{VA+32+i}, 0")
    for i in range(8): a(f"v_mov_b32 v{SS+8+i}, 0xff800000")
    a(f"""
    v_mov_b32 v{VM}, 0xff61b1e6
    v_mov_b32 v{VMC}, 0xff61b1e6
    v_mov_b32 v{VTH}, 0xff61b1e6
    v_mov_b32 v{VMAILA}, {MAIL}
    s_mov_b32 s37, 0x{C_SCALE:x}
    s_mov_b32 s44, 0x{fbits(THR/CF):x}
    s_mov_b32 s36, {1 if kv else 0}
    s_lshl_b32 s45, 1, s26
    s_waitcnt vmcnt(0)
    """)
    if cyc: stamp(6); a("s_waitcnt lgkmcnt(0)")

    def check(sb, lbl):
        S=SS+8*sb
        a(f"""
        v_max3_f32 v{T0}, v{S}, v{S+1}, v{S+2}
        v_max3_f32 v{T1}, v{S+3}, v{S+4}, v{S+5}
        v_max3_f32 v{T0}, v{T0}, v{S+6}, v{S+7}
        v_max_f32 v{T0}, v{T0}, v{T1}
        v_cmp_gt_f32 vcc, v{T0}, v{VTH}
        s_cbranch_vccnz L_rare{lbl}
        """)
        a.label(f"L_ret{lbl}")
    def softmax_B(sb):
        S=SS+8*sb
        for i in range(8): a(f"v_fma_f32 v{S+i}, v{S+i}, s37, -v{VMC}")
        for i in range(8): a(f"v_exp_f32 v{S+i}, v{S+i}")
        for i in range(4): a(f"v_cvt_pk_bf16_f32 v{P0+i}, v{S+2*i}, v{S+2*i+1}")
    def pv(vb, t):
        V=VA+32*vb
        a(f"v_mfma_f32_16x16x32_bf16 v[{O0+4*t}:{O0+4*t+3}], v[{V+4*t}:{V+4*t+3}], v[{P0}:{P0+3}], v[{O0+4*t}:{O0+4*t+3}]")
    def lsum():
        a(f"v_mfma_f32_16x16x32_bf16 v[{L0}:{L0+3}], v[{ONE}:{ONE+3}], v[{P0}:{P0+3}], v[{L0}:{L0+3}]")
    def rare(lbl):
        a.label(f"L_rare{lbl}")
        a(f"""
        v_max_f32 v{T0}, v{T0}, v{VM}
        v_mov_b32 v{T1}, v{T0}
        s_nop 1
        v_permlane16_swap_b32 v{T0}, v{T1}
        v_max_f32 v{T0}, v{T0}, v{T1}
        v_mov_b32 v{T1}, v{T0}
        s_nop 1
        v_permlane32_swap_b32 v{T0}, v{T1}
        v_max_f32 v{VM}, v{T0}, v{T1}
        v_mul_f32 v{T2}, s37, v{VM}
        v_add_f32 v{VTH}, s44, v{VM}
        v_sub_f32 v{T3}, v{VMC}, v{T2}
        v_exp_f32 v{T3}, v{T3}
        v_mov_b32 v{VMC}, v{T2}
        s_nop 0
        """)
        for i in range(4): a(f"v_mul_f32 v{L0+i}, v{T3}, v{L0+i}")
        for i in range(32): a(f"v_mul_f32 v{O0+i}, v{T3}, v{O0+i}")
        a(f"s_branch L_ret{lbl}")

    a.label("L_cloop")
    for r in range(R):
        cur=r&1; prev=cur^1
        base=r*SLOT
        S=SS+8*cur
        V=VA+32*cur
        if pre:
            assert kv and not prof and not touch and not nocomp
            def vread(t,hb):
                a(f"ds_read_b64_tr_b16 v[{V+4*t+2*hb}:{V+4*t+2*hb+1}], v{VB+t} offset:{base+8192+hb*4096}")
            def qk(kb,s):
                c = "0" if s==0 else f"v[{S+4*kb}:{S+4*kb+3}]"
                a(f"v_mfma_f32_16x16x32_bf16 v[{S+4*kb}:{S+4*kb+3}], v[{K0+16*kb+4*s}:{K0+16*kb+4*s+3}], v[{Q0+4*s}:{Q0+4*s+3}], {c}")
            check(prev, r)
            softmax_B(prev)
            npre = 9 if pre==1 else (0 if pre==2 else pre-2)
            mf=[lsum]+[(lambda t=t: pv(prev,t)) for t in range(8)]
            if npre: a("s_nop 1")
            for f in mf[:npre]: f()
            a("s_barrier")
            a(f"ds_read_b32 v{VMAIL}, v{VMAILA}")
            for kb in range(2):
                for s in range(4):
                    a(f"ds_read_b128 v[{K0+16*kb+4*s}:{K0+16*kb+4*s+3}], v{KA+s} offset:{base+kb*4096}")
            vl=[(t,hb) for t in range(8) for hb in range(2)]
            for x in vl[:6]: vread(*x)
            for f in mf[npre:]: f()
            a("s_waitcnt lgkmcnt(6)")
            for s in range(4):
                qk(0,s); qk(1,s)
                if s<3:
                    for x in vl[6+2*s:8+2*s]: vread(*x)
            a("s_waitcnt lgkmcnt(11)")
            for x in vl[12:]: vread(*x)
            a(f"s_add_u32 s36, s36, 1")
            a(f"s_waitcnt lgkmcnt(0)")
            if kvprof==3: a("s_memrealtime s[74:75]")
            a(f"v_cmp_eq_u32 vcc, s36, v{VMAIL}")
            a(f"s_cbranch_vccnz L_last{(r+1)%R}")
            continue
        a("s_barrier")
        if prof and r==0:
            for (it,sl) in ((4,3),(24,6),(44,7)):
                a(f"s_cmp_eq_u32 s36, {it}")
                a(f"s_cbranch_scc0 L_pr{sl}")
                a(f"s_memrealtime s[{60+2*sl}:{61+2*sl}]")
                a("s_waitcnt lgkmcnt(0)")
                a.label(f"L_pr{sl}")
        if r==0 and touch and not noepi:
            a(f"s_cmp_eq_u32 s36, {touch}")
            a("s_cbranch_scc1 L_touch")
            a.label("L_touchret")
        a(f"ds_read_b32 v{VMAIL}, v{VMAILA}")
        if not nocomp:
            for kb in range(2):
                for s in range(4):
                    a(f"ds_read_b128 v[{K0+16*kb+4*s}:{K0+16*kb+4*s+3}], v{KA+s} offset:{base+kb*4096}")
            check(prev, r)
            softmax_B(prev)
            def vread(t,hb):
                a(f"ds_read_b64_tr_b16 v[{V+4*t+2*hb}:{V+4*t+2*hb+1}], v{VB+t} offset:{base+8192+hb*4096}")
            def qk(kb,s):
                c = "0" if s==0 else f"v[{S+4*kb}:{S+4*kb+3}]"
                a(f"v_mfma_f32_16x16x32_bf16 v[{S+4*kb}:{S+4*kb+3}], v[{K0+16*kb+4*s}:{K0+16*kb+4*s+3}], v[{Q0+4*s}:{Q0+4*s+3}], {c}")
            vread(0,0); vread(0,1)
            lsum()
            vread(1,0); vread(1,1)
            pv(prev,0)
            vread(2,0); vread(2,1)
            pv(prev,1)
            a("s_waitcnt lgkmcnt(6)")
            for t in range(2,6):
                pv(prev,t); vread(t+1,0); vread(t+1,1)
            pv(prev,6)
            vread(7,0)
            pv(prev,7)
            a("s_waitcnt lgkmcnt(14)")
            vread(7,1)
            for s in range(4): qk(0,s); qk(1,s)
        a(f"s_add_u32 s36, s36, 1")
        a(f"s_waitcnt lgkmcnt(0)")
        a(f"v_cmp_eq_u32 vcc, s36, v{VMAIL}")
        a(f"s_cbranch_vccnz L_last{(r+1)%R}" if kv else f"s_cbranch_vccnz L_drain{cur}")
    a("s_branch L_cloop")
    if kv:
        assert not nocomp and not prof and not touch
        for r in range(R):
            cur=r&1; prev=cur^1; base=r*SLOT; S=SS+8*cur; V=VA+32*cur
            def vread(t,hb):
                a(f"ds_read_b64_tr_b16 v[{V+4*t+2*hb}:{V+4*t+2*hb+1}], v{VB+t} offset:{base+8192+hb*4096}")
            def qk(kb,s_):
                c = "0" if s_==0 else f"v[{S+4*kb}:{S+4*kb+3}]"
                a(f"v_mfma_f32_16x16x32_bf16 v[{S+4*kb}:{S+4*kb+3}], v[{K0+16*kb+4*s_}:{K0+16*kb+4*s_+3}], v[{Q0+4*s_}:{Q0+4*s_+3}], {c}")
            a.label(f"L_last{r}")
            if kvprof in (1,3): a("s_memrealtime s[72:73]")
            a("s_barrier")
            if kvprof==1: a("s_memrealtime s[74:75]")
            for kb in range(2):
                for s_ in range(4):
                    a(f"ds_read_b128 v[{K0+16*kb+4*s_}:{K0+16*kb+4*s_+3}], v{KA+s_} offset:{base+kb*4096}")
            a(f"ds_read_b64 v[{VMAIL}:{VMAIL+1}], v{VMAILA} offset:8")
            check(prev, f"p{r}")
            softmax_B(prev)
            a("s_nop 1")
            lsum()
            for t in range(4): pv(prev,t)
            a("s_waitcnt lgkmcnt(0)")
            for s_ in range(4): qk(0,s_); qk(1,s_)
            for t in range(4,8): pv(prev,t)
            a("s_nop 3")
            check(cur, f"c{r}")
            softmax_B(cur)
            if kvprof==2: a("s_memrealtime s[72:73]")
            a("s_barrier")
            if kvprof==2: a("s_memrealtime s[74:75]")
            if kvprof==2: a("s_waitcnt lgkmcnt(0)")
            for t in range(2,8): vread(t,0); vread(t,1)
            lsum()
            a("s_waitcnt lgkmcnt(10)"); pv(cur,2); vread(0,0); vread(0,1)
            a("s_waitcnt lgkmcnt(10)"); pv(cur,3); vread(1,0); vread(1,1)
            def omax(t):
                o=O0+4*t
                if t==2:
                    a(f"v_max_f32 v{T0}, |v{o}|, |v{o+1}|")
                    a(f"v_max_f32 v{T1}, |v{o+2}|, |v{o+3}|")
                else:
                    a(f"v_max3_f32 v{T0}, v{T0}, |v{o}|, |v{o+1}|")
                    a(f"v_max3_f32 v{T1}, v{T1}, |v{o+2}|, |v{o+3}|")
            for (t,n,mx) in ((4,10,()),(5,8,(2,)),(6,6,(3,)),(7,4,(4,)),(0,2,(5,)),(1,0,(6,7))):
                a(f"s_waitcnt lgkmcnt({n})"); pv(cur,t)
                if trim:
                    for x in mx: omax(x)
            if kvprof==4:
                a("s_memrealtime s[72:73]")
                a("s_memrealtime s[74:75]")
            a("s_branch L_epi")
    if touch and not noepi:
        assert touch%R==0
        a.label("L_touch")
        if tmode==0:
            a(f"""
            s_mov_b64 exec, 1
            global_load_dword v{DUM}, v{FLO}, s[40:41]
            global_load_dword v{DUM}, v{OADR}, s[10:11]
            s_mov_b64 exec, -1
            s_branch L_touchret
            """)
        else:
            a(f"""
            s_mov_b64 exec, 15
            global_load_dword v{DUM}, v{FLP}, s[40:41] {tpol}
            s_mov_b64 exec, -1
            s_branch L_touchret
            """)
    for par in range(0 if kv else 2):
        a.label(f"L_drain{par}")
        a(f"ds_read_b64 v[{VMAIL}:{VMAIL+1}], v{VMAILA} offset:8")
        if not nocomp:
            a("s_nop 7")
            check(par, f"d{par}")
            softmax_B(par)
            a("s_nop 1")
            lsum()
            for t in (2,3,4,5,6,7,0,1): pv(par,t)
        a("s_branch L_epi")
    if not nocomp:
        for r in range(R): rare(r)
        if kv:
            for r in range(R): rare(f"p{r}"); rare(f"c{r}")
        else:
            rare("d0"); rare("d1")
    a.label("L_epi")
    stamp(1)
    if cyc: stamp(7)
    if not noepi:
        o=O0+8
        pregs=[76,78,80,82]
        def pcmp(rg):
            if chk: return f"v_cmp_eq_u32 vcc, v{rg+1}, v{VMAIL}"
            return f"v_cmp_eq_u64 vcc, v[{rg}:{rg+1}], v[{VMAIL}:{VMAIL+1}]"
        def pollins(rg):
            if pollop=='load': return f"global_load_dwordx2 v[{rg}:{rg+1}], v{FLP}, s[40:41] {xp}"
            return f"global_atomic_add_x2 v[{rg}:{rg+1}], v{FLP}, v[84:85], s[40:41] {pollop}"
        if pollop!='load':
            a("v_mov_b32 v84, 0")
            a("v_mov_b32 v85, 0")
        if not (trim and kv):
            a("s_nop 4")
            a(f"v_max3_f32 v{T0}, |v{o}|, |v{o+1}|, |v{o+2}|")
            a(f"v_max3_f32 v{T1}, |v{o+3}|, |v{o+4}|, |v{o+5}|")
            k=6; t=0
            while k<24:
                tr=(T0,T1)[t&1]
                a(f"v_max3_f32 v{tr}, v{tr}, |v{o+k}|, |v{o+k+1}|")
                k+=2; t+=1
        a(f"""
        v_max_f32 v{T0}, v{T0}, v{T1}
        v_mov_b32 v{GM}, v{VMC}
        v_mov_b32 v{T1}, v{T0}
        v_mov_b32 v{GM+1}, v{L0}
        s_nop 0
        v_permlane16_swap_b32 v{T0}, v{T1}
        v_max_f32 v{T0}, v{T0}, v{T1}
        v_mov_b32 v{T1}, v{T0}
        v_mov_b32 v{GM+3}, 0
        s_nop 0
        v_permlane32_swap_b32 v{T0}, v{T1}
        v_max_f32 v{T0}, v{T0}, v{T1}
        v_frexp_exp_i32_f32 v{T1}, v{T0}
        v_sub_u32 v{T1}, 15, v{T1}
        v_min_i32 v{GM+2}, 0x7e, v{T1}
        v_ldexp_f32 v12, 1.0, v{GM+2}
        """)
        CS=60; CU=[61,62,63]
        def dpp2():
            for (qp,pre) in (("[1,0,3,2]",True),("[2,3,0,1]",False)):
                a(f"v_add_u32_dpp v{CU[0]}, v{CU[0]}, v{CU[0]} quad_perm:{qp} row_mask:0xf bank_mask:0xf")
                a(f"v_add_u32_dpp v{CU[1]}, v{CU[1]}, v{CU[1]} quad_perm:{qp} row_mask:0xf bank_mask:0xf")
                if pre: a("s_nop 0")
                a(f"v_add_u32_dpp v{CU[2]}, v{CU[2]}, v{CU[2]} quad_perm:{qp} row_mask:0xf bank_mask:0xf")
        if chk:
            a(f"""
            s_mov_b64 exec, 0xffff
            global_store_dwordx4 v{MLO}, v[{GM}:{GM+3}], s[40:41] {xst}
            s_mov_b64 exec, -1
            s_waitcnt lgkmcnt(0)
            v_dot2_u32_u16 v{CS}, v{GM}, s80, v{VMAIL+1}
            v_dot2_u32_u16 v{CS}, v{GM+1}, s81, v{CS}
            v_dot2_u32_u16 v{CS}, v{GM+2}, s82, v{CS}
            """)
        for u in range(1,4):
            ob=O0+8*u; g=G0+4*(u-1)
            for i in range(4):
                a(f"v_pk_mul_f32 v[{ob+2*i}:{ob+2*i+1}], v[{ob+2*i}:{ob+2*i+1}], v[12:13] op_sel_hi:[1,0]")
            for i in range(4):
                a(f"v_cvt_pk_f16_f32 v{g+i}, v{ob+2*i}, v{ob+2*i+1}")
            if chk!=2: a(f"global_store_dwordx4 v{XAO+u-1}, v[{g}:{g+3}], s[40:41] {xst}")
            if chk:
                for i in range(4):
                    a(f"v_dot2_u32_u16 v{CU[u-1]}, v{g+i}, s{76+i}, v{CS if i==0 else CU[u-1]}")
        if chk:
            dpp2()
            a(f"""
            v_cndmask_b32 v14, v{CU[2]}, v{CU[1]}, s[86:87]
            v_mov_b32 v15, v{VMAIL}
            v_cndmask_b32 v14, v14, v{CU[0]}, s[84:85]
            s_mov_b64 exec, s[88:89]
            global_store_dwordx2 v{FLO}, v[14:15], s[40:41] {xst}
            """)
            if chk==2:
                a("s_mov_b64 exec, -1")
                for u in range(1,4):
                    g=G0+4*(u-1)
                    a(f"global_store_dwordx4 v{XAO+u-1}, v[{g}:{g+3}], s[40:41] {xst}")
        else:
          a(f"""
        s_mov_b64 exec, 0xffff
        global_store_dwordx4 v{MLO}, v[{GM}:{GM+3}], s[40:41] {xst}
        s_mov_b64 exec, 1
        s_waitcnt vmcnt(0) lgkmcnt(0)
        {f"global_store_dwordx2 v{FLO}, v[{VMAIL}:{VMAIL+1}], s[40:41] {xst}" if flop=='store' else f"global_atomic_swap_x2 v{FLO}, v[{VMAIL}:{VMAIL+1}], s[40:41] {flop}"}
        """)
        stamp(2)
        a(f"""
        {'s_mov_b32 s46, 7' if chk else 's_andn2_b32 s46, 15, s45'}
        s_mov_b32 s47, 0
        s_mov_b64 exec, s[46:47]
        s_mov_b32 s36, {spin}
        """)
        if npoll==1:
            a("s_branch L_poll0")
            a.label("L_poll")
            if psleep: a(f"s_sleep {psleep}")
            a.label("L_poll0")
            a(f"""
            {pollins(pregs[0])}
            s_sub_u32 s36, s36, 1
            s_cmp_eq_u32 s36, 0
            s_cbranch_scc1 L_poll_ok
            s_waitcnt vmcnt(0)
            {pcmp(pregs[0])}
            s_cmp_eq_u32 vcc_lo, s46
            s_cbranch_scc0 L_poll
            """)
        else:
            regs=pregs[:npoll]
            for i,rg in enumerate(regs):
                a(pollins(rg))
                if i<npoll-1: a(f"s_sleep {psleep}")
            a.label("L_poll")
            for i,rg in enumerate(regs):
                a(f"""
                s_waitcnt vmcnt({npoll-1})
                {pcmp(rg)}
                s_cmp_eq_u32 vcc_lo, s46
                s_cbranch_scc1 L_poll_ok
                {pollins(rg)}
                """)
            a(f"""
            s_sub_u32 s36, s36, 1
            s_cmp_eq_u32 s36, 0
            s_cbranch_scc0 L_poll
            """)
        a.label("L_poll_ok")
        a("s_mov_b64 exec, -1")
        stamp(3)
        if pwait: a("s_waitcnt vmcnt(0)")
        AC=88
        if chk: a.label("L_reload")
        for u in range(1,4):
            a(f"global_load_dwordx4 v[{XML+4*(u-1)}:{XML+4*(u-1)+3}], v{MLI+u-1}, s[40:41] {xp}")
        for u in range(1,4):
            a(f"global_load_dwordx4 v[{X0+4*(u-1)}:{X0+4*(u-1)+3}], v{XAI+u-1}, s[40:41] {xp}")
        nl=3
        if chk:
            a(f"""
            s_mov_b64 exec, s[88:89]
            global_load_dwordx2 v[86:87], v{FLP}, s[40:41] {xp}
            s_mov_b64 exec, -1
            """)
            nl=4
        a(f"s_waitcnt vmcnt({nl})")
        m=[VMC, XML, XML+4, XML+8]
        l=[L0, XML+1, XML+5, XML+9]
        kk=[None, XML+2, XML+6, XML+10]
        if chk:
            for u in range(1,4):
                a(f"v_dot2_u32_u16 v{CU[u-1]}, v{m[u]}, s80, v{VMAIL+1}")
            for u in range(1,4):
                a(f"v_dot2_u32_u16 v{CU[u-1]}, v{l[u]}, s81, v{CU[u-1]}")
            for u in range(1,4):
                a(f"v_dot2_u32_u16 v{CU[u-1]}, v{kk[u]}, s82, v{CU[u-1]}")
        a(f"""
        v_max3_f32 v{T0}, v{m[0]}, v{m[1]}, v{m[2]}
        v_max_f32 v{T0}, v{T0}, v{m[3]}
        v_sub_f32 v12, v{m[0]}, v{T0}
        v_sub_f32 v13, v{m[1]}, v{T0}
        v_sub_f32 v14, v{m[2]}, v{T0}
        v_sub_f32 v15, v{m[3]}, v{T0}
        v_exp_f32 v12, v12
        v_exp_f32 v13, v13
        v_exp_f32 v14, v14
        v_exp_f32 v15, v15
        v_sub_u32 v{kk[1]}, 0, v{kk[1]}
        v_sub_u32 v{kk[2]}, 0, v{kk[2]}
        v_sub_u32 v{kk[3]}, 0, v{kk[3]}
        v_mul_f32 v{T1}, v{l[0]}, v12
        v_fmac_f32 v{T1}, v{l[1]}, v13
        v_fmac_f32 v{T1}, v{l[2]}, v14
        v_fmac_f32 v{T1}, v{l[3]}, v15
        v_rcp_f32 v{T3}, v{T1}
        v_ldexp_f32 v13, v13, v{kk[1]}
        v_ldexp_f32 v14, v14, v{kk[2]}
        v_ldexp_f32 v15, v15, v{kk[3]}
        """)
        if trim==2:
            a(f"""
            v_fma_f32 v{T2}, -v{T1}, v{T3}, 1.0
            v_fmac_f32 v{T3}, v{T3}, v{T2}
            v_mul_f32 v12, v12, v{T3}
            v_mul_f32 v13, v13, v{T3}
            v_mul_f32 v14, v14, v{T3}
            v_mul_f32 v15, v15, v{T3}
            """)
            for i in range(8):
                a(f"v_mul_f32 v{AC+i}, v{O0+i}, v12")
        else:
            for i in range(8):
                a(f"v_mul_f32 v{AC+i}, v{O0+i}, v12")
            a(f"""
        v_fma_f32 v{T2}, -v{T1}, v{T3}, 1.0
        v_fmac_f32 v{T3}, v{T3}, v{T2}
        """)
        a("s_waitcnt vmcnt(0)")
        stamp(4)
        def mix(u):
            for i in range(8):
                a(f"v_fma_mix_f32 v{AC+i}, v{X0+4*(u-1)+i//2}, v{12+u}, v{AC+i} op_sel:[{i&1},0,0] op_sel_hi:[1,0,0]")
        if chk:
            for i in range(4):
                for u in range(1,4):
                    a(f"v_dot2_u32_u16 v{CU[u-1]}, v{X0+4*(u-1)+i}, s{76+i}, v{CU[u-1]}")
            mix(1)
            for u in range(3): a(f"v_add_u32_dpp v{CU[u]}, v{CU[u]}, v{CU[u]} quad_perm:[1,0,3,2] row_mask:0xf bank_mask:0xf")
            mix(2)
            for u in range(3): a(f"v_add_u32_dpp v{CU[u]}, v{CU[u]}, v{CU[u]} quad_perm:[2,3,0,1] row_mask:0xf bank_mask:0xf")
            mix(3)
            a(f"""
            v_cndmask_b32 v{T0}, v{CU[2]}, v{CU[1]}, s[86:87]
            v_cndmask_b32 v{T0}, v{T0}, v{CU[0]}, s[84:85]
            v_cmp_ne_u32 vcc, v{T0}, v86
            s_and_b64 vcc, vcc, s[88:89]
            s_cbranch_scc0 L_verified
            s_sub_u32 s90, s90, 1
            s_cmp_eq_u32 s90, 0
            s_cbranch_scc0 L_reload
            """)
            a.label("L_verified")
        else:
            for u in range(1,4): mix(u)
        if trim!=2:
            for i in range(8):
                a(f"v_mul_f32 v{O0+i}, v{AC+i}, v{T3}")
        FO = AC if trim==2 else O0
        a(f"""
        v_cvt_pk_bf16_f32 v12, v{FO}, v{FO+1}
        v_cvt_pk_bf16_f32 v13, v{FO+2}, v{FO+3}
        v_cvt_pk_bf16_f32 v14, v{FO+4}, v{FO+5}
        v_cvt_pk_bf16_f32 v15, v{FO+6}, v{FO+7}
        global_store_dwordx2 v{OADR}, v[12:13], s[10:11] {opol}
        global_store_dwordx2 v{OADR}, v[14:15], s[10:11] offset:32 {opol}
        """)
    if ts:
        a("s_waitcnt vmcnt(0)")
        a("v_mov_b32 v8, 0")
        stamp(5)
        a(f"""
        s_waitcnt lgkmcnt(0)
        s_cmp_lg_u32 s24, 0
        s_cbranch_scc1 L_done
        s_lshl_b32 s3, s2, 6
        s_add_u32 s14, s14, s3
        s_addc_u32 s15, s15, 0
        s_add_u32 s14, s14, {TS_OFF}
        s_addc_u32 s15, s15, 0
        """)
        if cyc:
            a("s_sub_u32 s72, s74, s72")
            a("s_mov_b32 s73, 0")
        elif not prof and not kvprof:
            a("s_mov_b32 s72, s90" if chk else "s_mov_b32 s72, s36")
            a("s_mov_b32 s73, 0")
        if not prof and not kvprof:
            a("s_getreg_b32 s74, hwreg(HW_REG_XCC_ID)" if xcc else "s_mov_b32 s74, 0")
            a("s_mov_b32 s75, 0")
        for i in range(0,6 if lprof else 8,2):
            a(f"""
            v_mov_b32 v{32+2*i}, s{60+2*i}
            v_mov_b32 v{33+2*i}, s{61+2*i}
            v_mov_b32 v{34+2*i}, s{62+2*i}
            v_mov_b32 v{35+2*i}, s{63+2*i}
            global_store_dwordx4 v8, v[{32+2*i}:{35+2*i}], s[14:15] offset:{8*i}
            """)
    a.label("L_done")
    a("s_endpgm")
    txt=HDR+f"; @launch grid=(256,1,1) block=(320,1,1) lds={lds}\n"+'.amdgcn_target "amdgcn-amd-amdhsa--gfx950"\n.text\n'+kernel_head(NAME)+a.text()+'.section .rodata,"a"\n.p2align 6\n'+kernel_desc(NAME,nv or NVGPR)
    return txt

if __name__=='__main__':
    import ast
    out=sys.argv[1]
    kw={}
    for x in sys.argv[2:]:
        k,v=x.split('=')
        try: v=ast.literal_eval(v)
        except Exception: pass
        kw[k]=v
    open(out,'w').write(gen(**kw))
```
